```python
import torch

def _softmax(x, axis=-1):
    return torch.softmax(x, dim=axis)
def _gelu(x):
    return torch.nn.functional.gelu(x, approximate="tanh")
def _silu(x):
    return torch.nn.functional.silu(x)
def _sigmoid(x):
    return torch.sigmoid(x)
def _layernorm(x, axis=-1, eps=1e-5):
    m = x.mean(dim=axis, keepdim=True)
    v = x.var(dim=axis, keepdim=True, unbiased=False)
    return (x - m) / torch.sqrt(v + eps)
def _scatter_add(tgt, idx, src, axis=0):
    return tgt.clone().index_add_(axis, idx, src)
def _segment_sum(src, seg, n):
    out = torch.zeros((n,) + src.shape[1:], dtype=src.dtype)
    return out.index_add_(0, seg, src)
def _pad(x, pw):
    flat = tuple(v for pair in reversed(pw) for v in pair)
    return torch.nn.functional.pad(x, flat)

kernel_name = 'recurrent_scan__linear_kernel_hedgehog__dense_activation_gelu__prompt'

def setup_inputs():

    _w = (lambda a: (lambda t: t.to(torch.bfloat16) if t.is_floating_point() else t)(torch.as_tensor(a)))
    def _A_setup():
        B, S, D, H = 1, 2048, 576, 32
        Dh = D // H
        return {
            "x": _w((lambda *s: torch.randn(*s, dtype=torch.bfloat16) * 0.05)(B, S, D)),
            "wqkv": _w((lambda *s: torch.randn(*s, dtype=torch.bfloat16) * 0.4)(D, 3 * D)),
            "w_phi": _w((lambda *s: torch.randn(*s, dtype=torch.bfloat16) * 0.4)(H, Dh, Dh) * (Dh ** -0.5)),
            "wo": _w((lambda *s: torch.randn(*s, dtype=torch.bfloat16) * 0.2)(D, D)),
        }
    _A_in = _A_setup()

    def _B_setup():
        B, S, D, F = 1, 2048, 576, 4608
        return {
            "x": _w((lambda *s: torch.randn(*s, dtype=torch.bfloat16) * 0.05)(B, S, D)),
            "w1": _w((lambda *s: torch.randn(*s, dtype=torch.bfloat16) * 0.4)(D, F) * (D ** -0.5)),
            "b1": _w((lambda *s: torch.randn(*s, dtype=torch.bfloat16) * 12.8)(F) * 0.01),
            "w2": _w((lambda *s: torch.randn(*s, dtype=torch.bfloat16) * 0.1)(F, D) * (F ** -0.5)),
            "b2": _w((lambda *s: torch.randn(*s, dtype=torch.bfloat16) * 0.8)(D) * 0.01),
        }
    _B_in = _B_setup()

    return {
        "A_x": _A_in["x"],
        "A_wqkv": _A_in["wqkv"],
        "A_w_phi": _A_in["w_phi"],
        "A_wo": _A_in["wo"],
        "B_x": _B_in["x"],
        "B_w1": _B_in["w1"],
        "B_b1": _B_in["b1"],
        "B_w2": _B_in["w2"],
        "B_b2": _B_in["b2"],
    }

def reference(A_x, A_wqkv, A_w_phi, A_wo, B_x, B_w1, B_b1, B_w2, B_b2):
    def _A_ref(x, wqkv, w_phi, wo):
        B, S, D = x.shape
        H = 32; Dh = D // H
        qkv = (lambda x, *d: x.permute(*d))((x @ wqkv).reshape(B, S, 3, H, Dh), 2, 0, 3, 1, 4)
        q, k, v = qkv[0], qkv[1], qkv[2]
        pq = torch.einsum("bhsd,hdf->bhsf", q, w_phi)
        pk = torch.einsum("bhsd,hdf->bhsf", k, w_phi)
        phi_q = torch.concatenate([_softmax(pq, axis=-1), _softmax(-pq, axis=-1)], axis=-1)
        phi_k = torch.concatenate([_softmax(pk, axis=-1), _softmax(-pk, axis=-1)], axis=-1)
        kv = torch.einsum("bhsf,bhsd->bhfd", phi_k, v)
        z  = torch.einsum("bhsf->bhf", phi_k)
        num = torch.einsum("bhqf,bhfd->bhqd", phi_q, kv)
        den = torch.einsum("bhqf,bhf->bhq", phi_q, z)[..., None] + 1e-6
        o = num / den
        return (lambda x, *d: x.permute(*d))(o, 0, 2, 1, 3).reshape(B, S, D) @ wo

    def _B_ref(x, w1, b1, w2, b2):
        h = torch.einsum("bsd,df->bsf", x, w1) + b1
        h = _gelu(h)
        return torch.einsum("bsf,fd->bsd", h, w2) + b2

    x = A_x
    xn = _layernorm(x, axis=-1)
    s = _A_ref(xn, A_wqkv, A_w_phi, A_wo)
    g = _silu(_B_ref(xn, B_w1, B_b1, B_w2, B_b2))
    return x + s * g
```

```python
import sys

NAME = "recurrent_scan__linear_kernel_hedgehog__dense_activation_gelu__prompt"
S, D, H, DH, F = 2048, 576, 32, 18, 4608

WS_XN = 0x0
WS_QKV = 0x300000
WS_H = 0xA00000
WS_KVP = 0x2000000
WS_O = 0x2800000
WS_SIZE = 268435456

KA = dict(x=0, wqkv=8, wphi=16, wo=24, bx=32, w1=40, b1=48, w2=56, b2=64, out=72, dbg=80, ws=88)


class K:
    def __init__(self, name):
        self.name = name
        self.L = []
        self.nlab = 0

    def __call__(self, s):
        self.L.append("    " + s)

    def c(self, s):
        self.L.append("    ; " + s)

    def label(self, l):
        self.L.append(l + ":")

    def newlab(self, p="L"):
        self.nlab += 1
        return f".{self.name[:12]}_{p}{self.nlab}"

    def nop(self, n):
        while n > 0:
            k = min(n, 16)
            self(f"s_nop {k-1}")
            n -= k

    def srd(self, sreg, plo, nbytes, add=0):
        if add:
            self(f"s_add_u32 s{sreg}, s{plo}, {add}")
            self(f"s_addc_u32 s{sreg+1}, s{plo+1}, 0")
        else:
            self(f"s_mov_b32 s{sreg}, s{plo}")
            self(f"s_mov_b32 s{sreg+1}, s{plo+1}")
        self(f"s_mov_b32 s{sreg+2}, {nbytes}")
        self(f"s_mov_b32 s{sreg+3}, 0x00020000")

    def text(self):
        return "\n".join(self.L)


def kernel_wrap(k, nvgpr, nsgpr=102, accum=None):
    accum = accum or ((nvgpr + 3) // 4 * 4)
    return f""".globl {k.name}
.p2align 8
.type {k.name},@function
{k.name}:
{k.text()}
    s_endpgm
""", f""".amdhsa_kernel {k.name}
  .amdhsa_next_free_vgpr {nvgpr}
  .amdhsa_next_free_sgpr {nsgpr}
  .amdhsa_accum_offset {accum}
  .amdhsa_group_segment_fixed_size 0
  .amdhsa_kernarg_size 96
  .amdhsa_user_sgpr_count 2
  .amdhsa_user_sgpr_kernarg_segment_ptr 1
  .amdhsa_system_sgpr_workgroup_id_x 1
.end_amdhsa_kernel
"""


def gen_ln():
    k = K("ln_kernel")
    k("s_cmp_ge_u32 s2, 64")
    k("s_cbranch_scc1 .ln_end")
    k(f"s_load_dwordx2 s[4:5], s[0:1], {KA['x']}")
    k(f"s_load_dwordx2 s[6:7], s[0:1], {KA['ws']}")
    k("s_waitcnt lgkmcnt(0)")
    k.srd(8, 4, S * D * 2)
    k.srd(12, 6, S * D * 2, add=WS_XN)
    k("v_lshrrev_b32 v1, 3, v0")
    k("s_lshl_b32 s3, s2, 5")
    k("v_add_u32 v1, s3, v1")
    k("v_and_b32 v2, 7, v0")
    k("v_mul_u32_u24 v1, 1152, v1")
    k("v_lshl_add_u32 v1, v2, 4, v1")
    for i in range(9):
        k(f"buffer_load_dwordx4 v[{8+4*i}:{11+4*i}], v1, s[8:11], 0 offen offset:{128*i}")
    k("s_waitcnt vmcnt(0)")
    for i in range(36):
        k(f"v_lshlrev_b32 v{48+2*i}, 16, v{8+i}")
        k(f"v_and_b32 v{49+2*i}, 0xffff0000, v{8+i}")
    k("v_add_f32 v2, v48, v49")
    for i in range(2, 72):
        k(f"v_add_f32 v2, v2, v{48+i}")

    def red8(reg):
        k.nop(2)
        k(f"v_add_f32_dpp v3, v{reg}, v{reg} quad_perm:[1,0,3,2] row_mask:0xf bank_mask:0xf")
        k.nop(2)
        k(f"v_add_f32_dpp v{reg}, v3, v3 quad_perm:[2,3,0,1] row_mask:0xf bank_mask:0xf")
        k.nop(2)
        k(f"v_add_f32_dpp v3, v{reg}, v{reg} row_half_mirror row_mask:0xf bank_mask:0xf")
        k(f"v_mov_b32 v{reg}, v3")
    red8(2)
    k("v_mul_f32 v2, 0x3ae38e39, v2")
    k("v_sub_f32 v4, v48, v2")
    k("v_mul_f32 v5, v4, v4")
    for i in range(1, 72):
        k(f"v_sub_f32 v4, v{48+i}, v2")
        k("v_fmac_f32 v5, v4, v4")
    red8(5)
    k("v_mul_f32 v5, 0x3ae38e39, v5")
    k("v_cvt_pk_bf16_f32 v6, v2, v5")
    k("v_lshlrev_b32 v2, 16, v6")
    k("v_and_b32 v5, 0xffff0000, v6")
    k("v_add_f32 v5, 0x3727c5ac, v5")
    k("v_cvt_pk_bf16_f32 v6, v5, v5")
    k("v_lshlrev_b32 v5, 16, v6")
    k("v_sqrt_f32 v5, v5")
    k.nop(1)
    k("v_cvt_pk_bf16_f32 v6, v5, v5")
    k("v_lshlrev_b32 v5, 16, v6")
    k("v_rcp_f32 v5, v5")
    k.nop(1)
    for i in range(36):
        a, b = 48 + 2 * i, 49 + 2 * i
        k(f"v_sub_f32 v{a}, v{a}, v2")
        k(f"v_sub_f32 v{b}, v{b}, v2")
        k(f"v_cvt_pk_bf16_f32 v4, v{a}, v{b}")
        k(f"v_lshlrev_b32 v{a}, 16, v4")
        k(f"v_and_b32 v{b}, 0xffff0000, v4")
        k(f"v_mul_f32 v{a}, v{a}, v5")
        k(f"v_mul_f32 v{b}, v{b}, v5")
        k(f"v_cvt_pk_bf16_f32 v{8+i}, v{a}, v{b}")
    for i in range(9):
        k(f"buffer_store_dwordx4 v[{8+4*i}:{11+4*i}], v1, s[12:15], 0 offen offset:{128*i}")
    k.label(".ln_end")
    return k


class GemmCfg:
    def __init__(self, BM, BN, BK):
        self.BM, self.BN, self.BK = BM, BN, BK
        self.WM = BM // 64
        self.WN = BN // 64
        assert BM % 64 == 0 and BN % 64 == 0 or (BN == 192)
        self.WN = BN // 64
        self.SA = BK * 2 + 16
        sb = BN * 2
        while (sb // 64) % 2 == 0 or sb % 64:
            sb += 64 if sb % 64 == 0 else (64 - sb % 64)
        self.SB = sb
        self.Abytes = BM * self.SA
        self.Bbytes = BK * self.SB
        self.buf = self.Abytes + self.Bbytes
        self.lds = 2 * self.buf
        self.CA = BK // 8
        self.ra = 256 // self.CA
        self.passA = BM // self.ra
        self.CB = BN // 8
        self.passB = BK * self.CB // 256
        assert BM % self.ra == 0 and (BK * self.CB) % 256 == 0


def magic_div(d, maxv):
    for s in range(8, 24):
        m = (1 << s) // d + 1
        if all((x * m) >> s == x // d for x in range(maxv)) and maxv * m < (1 << 32):
            return m, s
    raise Exception("no magic")


def gemm_setup(k, cfg, R):
    c = cfg
    lda, ldb = R['lda'], R['ldb']
    t = R['tmp']
    sh = c.CA.bit_length() - 1
    k(f"v_and_b32 v{t}, {c.CA-1}, v0")
    k(f"v_lshrrev_b32 v{t+1}, {sh}, v0")
    k(f"v_add_u32 v{t+2}, s{R['sm0']}, v{t+1}")
    k(f"s_mov_b32 s{R['stmp']}, {lda}")
    k(f"v_mul_lo_u32 v{t+2}, v{t+2}, s{R['stmp']}")
    for p in range(c.passA):
        k(f"v_lshl_add_u32 v{R['gA']+p}, v{t}, 4, v{t+2}")
        if p:
            k(f"v_add_u32 v{R['gA']+p}, {p*c.ra*lda}, v{R['gA']+p}")
    k(f"v_mul_u32_u24 v{t+1}, {c.SA}, v{t+1}")
    k(f"v_lshl_add_u32 v{R['wA']}, v{t}, 4, v{t+1}")
    m, s = magic_div(c.CB, c.passB * 256)
    for p in range(c.passB):
        k(f"v_add_u32 v{t}, {p*256}, v0")
        k(f"s_mov_b32 s{R['stmp']}, {m}")
        k(f"v_mul_lo_u32 v{t+1}, v{t}, s{R['stmp']}")
        k(f"v_lshrrev_b32 v{t+1}, {s}, v{t+1}")
        k(f"v_mul_u32_u24 v{t+2}, {c.CB}, v{t+1}")
        k(f"v_sub_u32 v{t+2}, v{t}, v{t+2}")
        k(f"s_mov_b32 s{R['stmp']}, {ldb}")
        k(f"v_mul_lo_u32 v{t+3}, v{t+1}, s{R['stmp']}")
        k(f"v_lshl_add_u32 v{t+3}, v{t+2}, 4, v{t+3}")
        k(f"s_lshl_b32 s{R['stmp']}, s{R['sn0']}, 1")
        k(f"v_add_u32 v{R['gB']+p}, s{R['stmp']}, v{t+3}")
        k(f"v_mul_u32_u24 v{t+1}, {c.SB}, v{t+1}")
        k(f"v_lshl_add_u32 v{t+1}, v{t+2}, 4, v{t+1}")
        k(f"v_add_u32 v{R['wB']+p}, {c.Abytes}, v{t+1}")
    k(f"v_and_b32 v{t}, 63, v0")
    k(f"v_lshrrev_b32 v{t+1}, 6, v0")
    k(f"v_lshrrev_b32 v{t+2}, 1, v{t+1}")
    k(f"v_mul_u32_u24 v{t+2}, {c.BM//2}, v{t+2}")
    k(f"v_and_b32 v{t+3}, 31, v{t}")
    k(f"v_add_u32 v{t+2}, v{t+2}, v{t+3}")
    k(f"v_mul_u32_u24 v{t+2}, {c.SA}, v{t+2}")
    k(f"v_lshrrev_b32 v{t+3}, 5, v{t}")
    k(f"v_lshl_add_u32 v{R['rX']}, v{t+3}, 4, v{t+2}")
    k(f"v_lshrrev_b32 v{t+2}, 5, v{t}")
    k(f"v_lshlrev_b32 v{t+2}, 3, v{t+2}")
    k(f"v_bfe_u32 v{t+3}, v{t}, 2, 2")
    k(f"v_add_u32 v{t+2}, v{t+2}, v{t+3}")
    k(f"v_mul_u32_u24 v{t+2}, {c.SB}, v{t+2}")
    k(f"v_and_b32 v{t+1}, 1, v{t+1}")
    k(f"v_mul_u32_u24 v{t+1}, {c.BN//2}, v{t+1}")
    k(f"v_bfe_u32 v{t+3}, v{t}, 4, 1")
    k(f"v_lshl_add_u32 v{t+1}, v{t+3}, 4, v{t+1}")
    k(f"v_and_b32 v{t+3}, 3, v{t}")
    k(f"v_lshl_add_u32 v{t+1}, v{t+3}, 2, v{t+1}")
    k(f"v_lshl_add_u32 v{t+2}, v{t+1}, 1, v{t+2}")
    k(f"v_add_u32 v{R['rW']}, {c.Abytes}, v{t+2}")


def gemm_loads(k, cfg, R):
    c = cfg
    for p in range(c.passA):
        k(f"buffer_load_dwordx4 v[{R['stg']+4*p}:{R['stg']+4*p+3}], v{R['gA']+p}, s[{R['srdA']}:{R['srdA']+3}], s{R['sofA']} offen")
    for p in range(c.passB):
        q = c.passA + p
        k(f"buffer_load_dwordx4 v[{R['stg']+4*q}:{R['stg']+4*q+3}], v{R['gB']+p}, s[{R['srdB']}:{R['srdB']+3}], s{R['sofB']} offen")
    k(f"s_add_u32 s{R['sofA']}, s{R['sofA']}, {c.BK*2}")
    k(f"s_add_u32 s{R['sofB']}, s{R['sofB']}, {c.BK*R['ldb']}")


def gemm_writes(k, cfg, R, b):
    c = cfg
    for p in range(c.passA):
        k(f"ds_write_b128 v{R['wA']}, v[{R['stg']+4*p}:{R['stg']+4*p+3}] offset:{b*c.buf + p*c.ra*c.SA}")
    for p in range(c.passB):
        q = c.passA + p
        k(f"ds_write_b128 v{R['wB']+p}, v[{R['stg']+4*q}:{R['stg']+4*q+3}] offset:{b*c.buf}")


def gemm_compute(k, cfg, R, b, acc):
    c = cfg
    nks = c.BK // 16
    fr = R['frag']
    per = 4 * (c.WM + c.WN)
    for ks in range(nks):
        base = fr + ks * per
        for im in range(c.WM):
            k(f"ds_read_b128 v[{base+4*im}:{base+4*im+3}], v{R['rX']} offset:{b*c.buf + im*32*c.SA + ks*32}")
        for i_n in range(c.WN):
            r = base + 4 * c.WM + 4 * i_n
            off = b * c.buf + ks * 16 * c.SB + i_n * 64
            k(f"ds_read_b64_tr_b16 v[{r}:{r+1}], v{R['rW']} offset:{off}")
            k(f"ds_read_b64_tr_b16 v[{r+2}:{r+3}], v{R['rW']} offset:{off + 4*c.SB}")
    nrd = c.WM + 2 * c.WN
    for ks in range(nks):
        base = fr + ks * per
        k(f"s_waitcnt lgkmcnt({(nks-1-ks)*nrd})")
        for i_n in range(c.WN):
            for im in range(c.WM):
                a = acc + 16 * (i_n * c.WM + im)
                wf = base + 4 * c.WM + 4 * i_n
                xf = base + 4 * im
                k(f"v_mfma_f32_32x32x16_bf16 v[{a}:{a+15}], v[{wf}:{wf+3}], v[{xf}:{xf+3}], v[{a}:{a+15}]")


def gemm_mainloop(k, cfg, R, nst, acc, tag):
    c = cfg
    assert nst % 2 == 0 and nst >= 2
    gemm_loads(k, c, R)
    k("s_waitcnt vmcnt(0)")
    gemm_writes(k, c, R, 0)
    k("s_waitcnt lgkmcnt(0)")
    k("s_barrier")
    npairs = nst // 2 - 1
    if npairs > 0:
        k(f"s_mov_b32 s{R['scnt']}, {npairs}")
        lab = f".{tag}_loop"
        k.label(lab)
        for b in range(2):
            gemm_loads(k, c, R)
            gemm_compute(k, c, R, b, acc)
            k("s_waitcnt vmcnt(0)")
            gemm_writes(k, c, R, 1 - b)
            k("s_waitcnt lgkmcnt(0)")
            k("s_barrier")
        k(f"s_sub_u32 s{R['scnt']}, s{R['scnt']}, 1")
        k(f"s_cmp_lg_u32 s{R['scnt']}, 0")
        k(f"s_cbranch_scc1 {lab}")
    gemm_loads(k, c, R)
    gemm_compute(k, c, R, 0, acc)
    k("s_waitcnt vmcnt(0)")
    gemm_writes(k, c, R, 1)
    k("s_waitcnt lgkmcnt(0)")
    k("s_barrier")
    gemm_compute(k, c, R, 1, acc)


def zero_acc(k, acc, n):
    for i in range(n):
        k(f"v_mov_b32 v{acc+i}, 0")


G1 = GemmCfg(128, 192, 32)
G1_NQ = 1728 // 192
G1_NF = 4608 // 192
G1_MT = S // 128
G1_WGS = G1_MT * (G1_NQ + G1_NF)


def gen_gemm1():
    c = G1
    k = K("gemm1_kernel")
    nacc = 16 * c.WM * c.WN
    R = dict(sm0=40, sn0=41, stmp=42, srdA=16, srdB=20, sofA=44, sofB=45, scnt=46,
             gA=1, gB=4, wA=8, wB=9, rX=13, rW=14, tmp=16, stg=20, frag=40, lda=1152)
    acc = 96
    k(f"s_cmp_ge_u32 s2, {G1_WGS}")
    k("s_cbranch_scc1 .g1_end")
    k(f"s_load_dwordx2 s[4:5], s[0:1], {KA['wqkv']}")
    k(f"s_load_dwordx2 s[6:7], s[0:1], {KA['w1']}")
    k(f"s_load_dwordx2 s[8:9], s[0:1], {KA['ws']}")
    k(f"s_load_dwordx2 s[10:11], s[0:1], {KA['b1']}")
    m, s = magic_div(33, G1_WGS + 64)
    k(f"s_mul_i32 s3, s2, {m}")
    k(f"s_lshr_b32 s3, s3, {s}")
    k("s_mul_i32 s12, s3, 33")
    k("s_sub_u32 s12, s2, s12")
    k(f"s_lshl_b32 s{R['sm0']}, s3, 7")
    k("s_waitcnt lgkmcnt(0)")
    k.srd(16, 8, S * D * 2, add=WS_XN)
    k("s_cmp_ge_u32 s12, 9")
    k("s_cbranch_scc1 .g1_ffn")
    k.srd(20, 4, 576 * 1728 * 2)
    k(f"s_mul_i32 s{R['sn0']}, s12, 192")
    R['ldb'] = 1728 * 2
    k(f"s_mov_b32 s{R['sofA']}, 0")
    k(f"s_mov_b32 s{R['sofB']}, 0")
    gemm_setup(k, c, R)
    zero_acc(k, acc, nacc)
    gemm_mainloop(k, c, R, 576 // c.BK, acc, "g1q")
    k.nop(16)
    k.srd(24, 8, S * 1728 * 2, add=WS_QKV)
    epilogue_store(k, c, R, acc, ldc=1728 * 2, mode="plain")
    k("s_branch .g1_end")
    k.label(".g1_ffn")
    k.srd(20, 6, 576 * 4608 * 2)
    k("s_sub_u32 s12, s12, 9")
    k(f"s_mul_i32 s{R['sn0']}, s12, 192")
    R['ldb'] = 4608 * 2
    k(f"s_mov_b32 s{R['sofA']}, 0")
    k(f"s_mov_b32 s{R['sofB']}, 0")
    gemm_setup(k, c, R)
    zero_acc(k, acc, nacc)
    gemm_mainloop(k, c, R, 576 // c.BK, acc, "g1f")
    k.nop(16)
    k.srd(24, 8, S * 4608 * 2, add=WS_H)
    k.srd(28, 10, 4608 * 2)
    epilogue_store(k, c, R, acc, ldc=4608 * 2, mode="gelu")
    k.label(".g1_end")
    return k


def epilogue_store(k, c, R, acc, ldc, mode):
    t = R['tmp']
    k(f"v_lshrrev_b32 v{t+1}, 6, v0")
    k(f"v_lshrrev_b32 v{t+2}, 1, v{t+1}")
    k(f"v_mul_u32_u24 v{t+2}, {c.BM//2}, v{t+2}")
    k(f"v_and_b32 v{t+3}, 31, v0")
    k(f"v_add_u32 v{t+2}, v{t+2}, v{t+3}")
    k(f"v_add_u32 v{t+2}, s{R['sm0']}, v{t+2}")
    k(f"s_mov_b32 s{R['stmp']}, {ldc}")
    k(f"v_mul_lo_u32 v{t}, v{t+2}, s{R['stmp']}")
    k(f"v_and_b32 v{t+1}, 1, v{t+1}")
    k(f"v_mul_u32_u24 v{t+1}, {c.BN//2}, v{t+1}")
    k(f"v_bfe_u32 v{t+3}, v0, 5, 1")
    k(f"v_lshl_add_u32 v{t+1}, v{t+3}, 2, v{t+1}")
    k(f"v_add_u32 v{t+1}, s{R['sn0']}, v{t+1}")
    k(f"v_lshl_add_u32 v{t}, v{t+1}, 1, v{t}")
    bt = R['frag']
    if mode == "gelu":
        k(f"v_lshlrev_b32 v{t+1}, 1, v{t+1}")
        for i_n in range(c.WN):
            for g in range(4):
                r = bt + 2 * (i_n * 4 + g)
                k(f"buffer_load_dwordx2 v[{r}:{r+1}], v{t+1}, s[28:31], 0 offen offset:{(i_n*32+8*g)*2}")
        k("s_waitcnt vmcnt(0)")
    for i_n in range(c.WN):
        for g in range(4):
            if mode == "gelu":
                rb = bt + 2 * (i_n * 4 + g)
                bb = bt + 32
                k(f"v_lshlrev_b32 v{bb}, 16, v{rb}")
                k(f"v_and_b32 v{bb+1}, 0xffff0000, v{rb}")
                k(f"v_lshlrev_b32 v{bb+2}, 16, v{rb+1}")
                k(f"v_and_b32 v{bb+3}, 0xffff0000, v{rb+1}")
            for im in range(c.WM):
                a = acc + 16 * (i_n * c.WM + im) + 4 * g
                if mode == "gelu":
                    for j in range(4):
                        gelu1(k, a + j, bb + j, bb + 4)
                k(f"v_cvt_pk_bf16_f32 v{a}, v{a}, v{a+1}")
                k(f"v_cvt_pk_bf16_f32 v{a+1}, v{a+2}, v{a+3}")
                off = im * 32 * ldc + (i_n * 32 + 8 * g) * 2
                if off < 4096:
                    k(f"buffer_store_dwordx2 v[{a}:{a+1}], v{t}, s[24:27], 0 offen offset:{off}")
                else:
                    k(f"v_add_u32 v{t+2}, {off}, v{t}")
                    k(f"buffer_store_dwordx2 v[{a}:{a+1}], v{t+2}, s[24:27], 0 offen")


C_G0 = -2.0 * 0.7978845608028654 * 1.4426950408889634
C_G1 = C_G0 * 0.044715


def f32hex(x):
    import struct
    return hex(struct.unpack("<I", struct.pack("<f", x))[0])


def gelu1(k, a, b, t):
    k(f"v_add_f32 v{a}, v{a}, v{b}")
    k(f"v_mul_f32 v{t}, v{a}, v{a}")
    k(f"v_mov_b32 v{t+1}, {f32hex(C_G0)}")
    k(f"v_fmac_f32 v{t+1}, {f32hex(C_G1)}, v{t}")
    k(f"v_mul_f32 v{t}, v{a}, v{t+1}")
    k(f"v_exp_f32 v{t}, v{t}")
    k.nop(1)
    k(f"v_add_f32 v{t}, 1.0, v{t}")
    k(f"v_rcp_f32 v{t}, v{t}")
    k.nop(1)
    k(f"v_mul_f32 v{a}, v{a}, v{t}")


LOG2E = 1.4426950408889634
ATT_W = 0
ATT_PHIT = 2048
ATT_VT = 2048 + 64 * 528
ATT_LDS_A = ATT_VT + 32 * 528
ATT_KV = 2048
ATT_LDS_B = ATT_KV + 24 * 256


def att_load_w(k, sh):
    k("v_cmp_gt_u32 vcc, 162, v0")
    k("s_and_saveexec_b64 s[40:41], vcc")
    k("s_cbranch_execz .L%d" % id(k) + "w")
    k("v_lshlrev_b32 v1, 2, v0")
    k(f"buffer_load_dword v2, v1, s[8:11], s{sh} offen")
    k("s_waitcnt vmcnt(0)")
    k("v_lshlrev_b32 v4, 16, v2")
    k("v_and_b32 v5, 0xffff0000, v2")
    k("v_lshlrev_b32 v1, 3, v0")
    k(f"ds_write_b64 v1, v[4:5] offset:{ATT_W}")
    k.label(".L%d" % id(k) + "w")
    k("s_mov_b64 exec, s[40:41]")


def att_feature(k, src, acc, wt, res):
    for i in range(9):
        k(f"v_lshlrev_b32 v{res+2*i}, 16, v{src+i}")
        k(f"v_and_b32 v{res+2*i+1}, 0xffff0000, v{src+i}")
    k(f"v_mov_b32 v{wt+18}, 0")
    for d in range(18):
        base = ATT_W + d * 72
        k(f"ds_read_b64 v[{wt}:{wt+1}], v{wt+18} offset:{base}")
        for q in range(4):
            k(f"ds_read_b64 v[{wt+2+4*q}:{wt+3+4*q}], v{wt+18} offset:{base+8+16*q}")
            k(f"ds_read_b64 v[{wt+4+4*q}:{wt+5+4*q}], v{wt+18} offset:{base+16+16*q}")
        k("s_waitcnt lgkmcnt(0)")
        for f in range(18):
            if d == 0:
                k(f"v_mul_f32 v{acc+f}, v{res+d}, v{wt+f}")
            else:
                k(f"v_fmac_f32 v{acc+f}, v{res+d}, v{wt+f}")
    for i in range(9):
        k(f"v_cvt_pk_bf16_f32 v{wt}, v{acc+2*i}, v{acc+2*i+1}")
        k(f"v_lshlrev_b32 v{acc+2*i}, 16, v{wt}")
        k(f"v_and_b32 v{acc+2*i+1}, 0xffff0000, v{wt}")
    k(f"v_max_f32 v{wt}, v{acc}, v{acc+1}")
    k(f"v_min_f32 v{wt+1}, v{acc}, v{acc+1}")
    for f in range(2, 18):
        k(f"v_max_f32 v{wt}, v{wt}, v{acc+f}")
        k(f"v_min_f32 v{wt+1}, v{wt+1}, v{acc+f}")
    k(f"v_mul_f32 v{wt}, {f32hex(LOG2E)}, v{wt}")
    k(f"v_mul_f32 v{wt+1}, {f32hex(LOG2E)}, v{wt+1}")
    k(f"v_mov_b32 v{wt+2}, {f32hex(LOG2E)}")
    for f in range(18):
        k(f"v_fma_f32 v{res+f}, v{acc+f}, v{wt+2}, -v{wt}")
        k(f"v_fma_f32 v{res+18+f}, -v{acc+f}, v{wt+2}, v{wt+1}")
    for f in range(36):
        k(f"v_exp_f32 v{res+f}, v{res+f}")
    k.nop(1)
    k(f"v_add_f32 v{wt}, v{res}, v{res+1}")
    k(f"v_add_f32 v{wt+1}, v{res+18}, v{res+19}")
    for f in range(2, 18):
        k(f"v_add_f32 v{wt}, v{wt}, v{res+f}")
        k(f"v_add_f32 v{wt+1}, v{wt+1}, v{res+18+f}")
    k(f"v_rcp_f32 v{wt}, v{wt}")
    k(f"v_rcp_f32 v{wt+1}, v{wt+1}")
    k.nop(1)
    for f in range(18):
        k(f"v_mul_f32 v{res+f}, v{res+f}, v{wt}")
        k(f"v_mul_f32 v{res+18+f}, v{res+18+f}, v{wt+1}")
    for i in range(18):
        k(f"v_cvt_pk_bf16_f32 v{acc+i}, v{res+2*i}, v{res+2*i+1}")
        k(f"v_lshlrev_b32 v{res+2*i}, 16, v{acc+i}")
        k(f"v_and_b32 v{res+2*i+1}, 0xffff0000, v{acc+i}")


def gen_attn_a():
    k = K("attna_kernel")
    k("s_cmp_ge_u32 s2, 256")
    k("s_cbranch_scc1 .aa_end")
    k(f"s_load_dwordx2 s[4:5], s[0:1], {KA['wphi']}")
    k(f"s_load_dwordx2 s[6:7], s[0:1], {KA['ws']}")
    k("s_lshr_b32 s20, s2, 3")
    k("s_and_b32 s21, s2, 7")
    k("s_mul_i32 s22, s20, 648")
    k("s_waitcnt lgkmcnt(0)")
    k.srd(8, 4, 32 * 648)
    k.srd(12, 6, S * 1728 * 2, add=WS_QKV)
    k.srd(16, 6, 32 * 8 * 24 * 256, add=WS_KVP)
    att_load_w(k, 22)
    k("s_lshl_b32 s23, s21, 8")
    k("v_add_u32 v1, s23, v0")
    k("v_mul_u32_u24 v1, 3456, v1")
    k("s_mul_i32 s24, s20, 36")
    k("s_add_u32 s24, s24, 1152")
    k("v_add_u32 v1, s24, v1")
    k("buffer_load_dwordx4 v[4:7], v1, s[12:15], 0 offen")
    k("buffer_load_dwordx4 v[8:11], v1, s[12:15], 0 offen offset:16")
    k("buffer_load_dword v12, v1, s[12:15], 0 offen offset:32")
    k("buffer_load_dwordx4 v[16:19], v1, s[12:15], 0 offen offset:1152")
    k("buffer_load_dwordx4 v[20:23], v1, s[12:15], 0 offen offset:1168")
    k("buffer_load_dword v24, v1, s[12:15], 0 offen offset:1184")
    k("s_waitcnt vmcnt(0) lgkmcnt(0)")
    k("s_barrier")
    att_feature(k, src=4, acc=32, wt=52, res=80)
    k("v_lshlrev_b32 v2, 1, v0")
    for i in range(18):
        k(f"ds_write_b16 v2, v{32+i} offset:{ATT_PHIT + (2*i)*528}")
        k(f"ds_write_b16_d16_hi v2, v{32+i} offset:{ATT_PHIT + (2*i+1)*528}")
    for i in range(9):
        k(f"ds_write_b16 v2, v{16+i} offset:{ATT_VT + (2*i)*528}")
        k(f"ds_write_b16_d16_hi v2, v{16+i} offset:{ATT_VT + (2*i+1)*528}")
    k("v_mov_b32 v3, 0x3f80")
    k(f"ds_write_b16 v2, v3 offset:{ATT_VT + 18*528}")
    k("s_waitcnt lgkmcnt(0)")
    k("s_barrier")
    k("v_lshrrev_b32 v3, 6, v0")
    k("s_nop 0")
    k("v_readfirstlane_b32 s25, v3")
    k("s_nop 1")
    k("s_cmp_ge_u32 s25, 2")
    k("s_cbranch_scc1 .aa_end")
    k("v_and_b32 v4, 31, v0")
    k("v_mul_u32_u24 v5, 528, v4")
    k("v_bfe_u32 v6, v0, 5, 1")
    k("v_lshl_add_u32 v5, v6, 4, v5")
    k("s_mul_i32 s26, s25, 16896")
    k("v_add_u32 v7, s26, v5")
    for i in range(16):
        k(f"v_mov_b32 v{32+i}, 0")
    for ks in range(16):
        k(f"ds_read_b128 v[{64+8*(ks%4)}:{67+8*(ks%4)}], v5 offset:{ATT_VT + ks*32}")
        k(f"ds_read_b128 v[{68+8*(ks%4)}:{71+8*(ks%4)}], v7 offset:{ATT_PHIT + ks*32}")
        if ks % 4 == 3:
            k("s_waitcnt lgkmcnt(0)")
            for q in range(4):
                k(f"v_mfma_f32_32x32x16_bf16 v[32:47], v[{64+8*q}:{67+8*q}], v[{68+8*q}:{71+8*q}], v[32:47]")
    k.nop(16)
    k("s_mul_i32 s27, s2, 6144")
    k("v_lshlrev_b32 v8, 2, v4")
    k("v_lshl_add_u32 v8, v6, 10, v8")
    k("s_lshl_b32 s26, s25, 7")
    k("s_add_u32 s27, s27, s26")
    k("v_add_u32 v8, s27, v8")
    k("v_add_u32 v9, 4096, v8")
    for r in range(12):
        off = (r & 3) * 256 + (r >> 2) * 2048
        if off < 4096:
            k(f"buffer_store_dword v{32+r}, v8, s[16:19], 0 offen offset:{off}")
        else:
            k(f"buffer_store_dword v{32+r}, v9, s[16:19], 0 offen offset:{off-4096}")
    k.label(".aa_end")
    return k


def gen_attn_b():
    k = K("attnb_kernel")
    k("s_cmp_ge_u32 s2, 256")
    k("s_cbranch_scc1 .ab_end")
    k(f"s_load_dwordx2 s[4:5], s[0:1], {KA['wphi']}")
    k(f"s_load_dwordx2 s[6:7], s[0:1], {KA['ws']}")
    k("s_lshr_b32 s20, s2, 3")
    k("s_and_b32 s21, s2, 7")
    k("s_mul_i32 s22, s20, 648")
    k("s_waitcnt lgkmcnt(0)")
    k.srd(8, 4, 32 * 648)
    k.srd(12, 6, S * 1728 * 2, add=WS_QKV)
    k.srd(16, 6, 32 * 8 * 24 * 256, add=WS_KVP)
    k.srd(28, 6, S * 576 * 2, add=WS_O)
    att_load_w(k, 22)
    k("s_lshl_b32 s23, s21, 8")
    k("v_add_u32 v1, s23, v0")
    k("v_mul_u32_u24 v1, 3456, v1")
    k("s_mul_i32 s24, s20, 36")
    k("v_add_u32 v1, s24, v1")
    k("buffer_load_dwordx4 v[4:7], v1, s[12:15], 0 offen")
    k("buffer_load_dwordx4 v[8:11], v1, s[12:15], 0 offen offset:16")
    k("buffer_load_dword v12, v1, s[12:15], 0 offen offset:32")
    k("s_mul_i32 s25, s20, 49152")
    k("v_lshlrev_b32 v2, 2, v0")
    for p in range(6):
        for c in range(8):
            k(f"s_add_u32 s26, s25, {c*6144 + p*1024}")
            k(f"buffer_load_dword v{16+c}, v2, s[16:19], s26 offen")
        k("s_waitcnt vmcnt(0)")
        for c in range(1, 8):
            k(f"v_add_f32 v16, v16, v{16+c}")
        k("v_cvt_pk_bf16_f32 v17, v16, v16")
        k("v_lshlrev_b32 v17, 16, v17")
        k(f"ds_write_b32 v2, v17 offset:{ATT_KV + p*1024}")
    k("s_waitcnt vmcnt(0) lgkmcnt(0)")
    k("s_barrier")
    att_feature(k, src=4, acc=32, wt=52, res=80)
    k("v_mov_b32 v3, 0")
    for d in range(19):
        base = ATT_KV + d * 256
        for q in range(9):
            k(f"ds_read_b128 v[{120+4*q}:{123+4*q}], v3 offset:{base+16*q}")
        k("s_waitcnt lgkmcnt(0)")
        k(f"v_mul_f32 v{32+d}, v80, v120")
        for f in range(1, 36):
            k(f"v_fmac_f32 v{32+d}, v{80+f}, v{120+f}")
    k("v_cvt_pk_bf16_f32 v52, v50, v50")
    k("v_lshlrev_b32 v52, 16, v52")
    k("v_add_f32 v52, 0x358637bd, v52")
    k("v_cvt_pk_bf16_f32 v52, v52, v52")
    k("v_lshlrev_b32 v52, 16, v52")
    k("v_rcp_f32 v52, v52")
    k.nop(1)
    for i in range(9):
        a, b = 32 + 2 * i, 33 + 2 * i
        k(f"v_cvt_pk_bf16_f32 v53, v{a}, v{b}")
        k(f"v_lshlrev_b32 v{a}, 16, v53")
        k(f"v_and_b32 v{b}, 0xffff0000, v53")
        k(f"v_mul_f32 v{a}, v{a}, v52")
        k(f"v_mul_f32 v{b}, v{b}, v52")
        k(f"v_cvt_pk_bf16_f32 v{60+i}, v{a}, v{b}")
    k("v_add_u32 v1, s23, v0")
    k("v_mul_u32_u24 v1, 1152, v1")
    k("v_add_u32 v1, s24, v1")
    k("buffer_store_dwordx4 v[60:63], v1, s[28:31], 0 offen")
    k("buffer_store_dwordx4 v[64:67], v1, s[28:31], 0 offen offset:16")
    k("buffer_store_dword v68, v1, s[28:31], 0 offen offset:32")
    k.label(".ab_end")
    return k


G5 = GemmCfg(64, 64, 32)
G5_WGS = (S // 64) * 9


def gen_final():
    c = G5
    k = K("final_kernel")
    R = dict(sm0=40, sn0=41, stmp=42, srdA=16, srdB=20, sofA=44, sofB=45, scnt=46,
             gA=1, gB=4, wA=8, wB=9, rX=13, rW=14, tmp=16, stg=20, frag=40, lda=9216, ldb=1152)
    acc1, acc2 = 80, 96
    k(f"s_cmp_ge_u32 s2, {G5_WGS}")
    k("s_cbranch_scc1 .g5_end")
    k(f"s_load_dwordx2 s[4:5], s[0:1], {KA['w2']}")
    k(f"s_load_dwordx2 s[6:7], s[0:1], {KA['wo']}")
    k(f"s_load_dwordx2 s[8:9], s[0:1], {KA['ws']}")
    k(f"s_load_dwordx2 s[10:11], s[0:1], {KA['b2']}")
    k(f"s_load_dwordx2 s[12:13], s[0:1], {KA['x']}")
    k(f"s_load_dwordx2 s[14:15], s[0:1], {KA['out']}")
    m, s = magic_div(9, G5_WGS + 64)
    k(f"s_mul_i32 s3, s2, {m}")
    k(f"s_lshr_b32 s3, s3, {s}")
    k("s_mul_i32 s47, s3, 9")
    k("s_sub_u32 s47, s2, s47")
    k(f"s_lshl_b32 s{R['sm0']}, s3, 6")
    k(f"s_lshl_b32 s{R['sn0']}, s47, 6")
    k("s_waitcnt lgkmcnt(0)")
    k.srd(16, 8, S * 4608 * 2, add=WS_H)
    k.srd(20, 4, 4608 * 576 * 2)
    k(f"s_mov_b32 s{R['sofA']}, 0")
    k(f"s_mov_b32 s{R['sofB']}, 0")
    gemm_setup(k, c, R)
    zero_acc(k, acc1, 32)
    gemm_mainloop(k, c, R, 4608 // c.BK, acc1, "g5a")
    k("s_barrier")
    k.srd(16, 8, S * 576 * 2, add=WS_O)
    k.srd(20, 6, 576 * 576 * 2)
    R['lda'] = 1152
    k(f"s_mov_b32 s{R['sofA']}, 0")
    k(f"s_mov_b32 s{R['sofB']}, 0")
    gemm_setup(k, c, R)
    gemm_mainloop(k, c, R, 576 // c.BK, acc2, "g5b")
    k.nop(16)
    k.srd(24, 14, S * 576 * 2)
    k.srd(28, 12, S * 576 * 2)
    k.srd(32, 10, 576 * 2)
    t = R['tmp']
    k(f"v_lshrrev_b32 v{t+1}, 6, v0")
    k(f"v_lshrrev_b32 v{t+2}, 1, v{t+1}")
    k(f"v_lshlrev_b32 v{t+2}, 5, v{t+2}")
    k(f"v_and_b32 v{t+3}, 31, v0")
    k(f"v_add_u32 v{t+2}, v{t+2}, v{t+3}")
    k(f"v_add_u32 v{t+2}, s{R['sm0']}, v{t+2}")
    k(f"v_mul_u32_u24 v{t}, 1152, v{t+2}")
    k(f"v_and_b32 v{t+1}, 1, v{t+1}")
    k(f"v_lshlrev_b32 v{t+1}, 5, v{t+1}")
    k(f"v_bfe_u32 v{t+3}, v0, 5, 1")
    k(f"v_lshl_add_u32 v{t+1}, v{t+3}, 2, v{t+1}")
    k(f"v_add_u32 v{t+1}, s{R['sn0']}, v{t+1}")
    k(f"v_lshlrev_b32 v{t+1}, 1, v{t+1}")
    k(f"v_add_u32 v{t}, v{t}, v{t+1}")
    for g in range(4):
        k(f"buffer_load_dwordx2 v[{40+2*g}:{41+2*g}], v{t}, s[28:31], 0 offen offset:{16*g}")
        k(f"buffer_load_dwordx2 v[{48+2*g}:{49+2*g}], v{t+1}, s[32:35], 0 offen offset:{16*g}")
    k("s_waitcnt vmcnt(0)")
    for g in range(4):
        for j in range(4):
            a1 = acc1 + 4 * g + j
            a2 = acc2 + 4 * g + j
            xr = 40 + 2 * g + (j >> 1)
            br = 48 + 2 * g + (j >> 1)
            if j & 1:
                k(f"v_and_b32 v60, 0xffff0000, v{xr}")
                k(f"v_and_b32 v61, 0xffff0000, v{br}")
            else:
                k(f"v_lshlrev_b32 v60, 16, v{xr}")
                k(f"v_lshlrev_b32 v61, 16, v{br}")
            k(f"v_cvt_pk_bf16_f32 v62, v{a1}, v{a2}")
            k("v_lshlrev_b32 v63, 16, v62")
            k("v_and_b32 v64, 0xffff0000, v62")
            k("v_add_f32 v63, v63, v61")
            k("v_cvt_pk_bf16_f32 v62, v63, v63")
            k("v_lshlrev_b32 v63, 16, v62")
            k(f"v_mul_f32 v62, {f32hex(-LOG2E)}, v63")
            k("v_exp_f32 v62, v62")
            k.nop(1)
            k("v_add_f32 v62, 1.0, v62")
            k("v_rcp_f32 v62, v62")
            k.nop(1)
            k("v_mul_f32 v63, v63, v62")
            k("v_cvt_pk_bf16_f32 v62, v63, v63")
            k("v_lshlrev_b32 v63, 16, v62")
            k("v_mul_f32 v63, v63, v64")
            k("v_cvt_pk_bf16_f32 v62, v63, v63")
            k("v_lshlrev_b32 v63, 16, v62")
            k(f"v_add_f32 v{a1}, v60, v63")
        a = acc1 + 4 * g
        k(f"v_cvt_pk_bf16_f32 v{a}, v{a}, v{a+1}")
        k(f"v_cvt_pk_bf16_f32 v{a+1}, v{a+2}, v{a+3}")
        k(f"buffer_store_dwordx2 v[{a}:{a+1}], v{t}, s[24:27], 0 offen offset:{16*g}")
    k.label(".g5_end")
    return k


def build(which):
    kernels = []
    launches = []
    k = gen_ln()
    kernels.append((k, 120))
    launches.append(("ln_kernel", 64, 256, 0))
    if which >= 2:
        k = gen_gemm1()
        kernels.append((k, 96 + 96))
        launches.append(("gemm1_kernel", G1_WGS, 256, G1.lds))
    if which >= 3:
        kernels.append((gen_attn_a(), 120))
        launches.append(("attna_kernel", 256, 256, ATT_LDS_A))
    if which >= 4:
        kernels.append((gen_attn_b(), 160))
        launches.append(("attnb_kernel", 256, 256, ATT_LDS_B))
    if which >= 5:
        kernels.append((gen_final(), 112))
        launches.append(("final_kernel", G5_WGS, 256, G5.lds))
    head = "; generated by dev/gen.py\n"
    for (n, g, b, lds) in launches:
        head += f"; @launch kernel={n} grid=({g},1,1) block=({b},1,1) lds={lds}\n"
    head += '.amdgcn_target "amdgcn-amd-amdhsa--gfx950"\n.text\n'
    body, desc = "", ""
    for (k, nv) in kernels:
        b, d = kernel_wrap(k, nv)
        body += b
        desc += ".p2align 6\n" + d
    return head + body + '.section .rodata,"a"\n' + desc


if __name__ == "__main__":
    which = int(sys.argv[1]) if len(sys.argv) > 1 else 99
    out = sys.argv[2] if len(sys.argv) > 2 else f"cdna_kernels/{NAME}.s"
    open(out, "w").write(build(which))
    print("wrote", out)
```

```python
import sys

NAME = "recurrent_scan__linear_kernel_hedgehog__dense_activation_gelu__prompt"
S, D, H, DH, F = 2048, 576, 32, 18, 4608

WS_XN = 0x0
WS_QKV = 0x300000
WS_H = 0xA00000
WS_KVP = 0x2000000
WS_O = 0x2800000
WS_SIZE = 268435456

KA = dict(x=0, wqkv=8, wphi=16, wo=24, bx=32, w1=40, b1=48, w2=56, b2=64, out=72, dbg=80, ws=88)


class K:
    def __init__(self, name):
        self.name = name
        self.L = []
        self.nlab = 0

    def __call__(self, s):
        self.L.append("    " + s)

    def c(self, s):
        self.L.append("    ; " + s)

    def label(self, l):
        self.L.append(l + ":")

    def newlab(self, p="L"):
        self.nlab += 1
        return f".{self.name[:12]}_{p}{self.nlab}"

    def nop(self, n):
        while n > 0:
            k = min(n, 16)
            self(f"s_nop {k-1}")
            n -= k

    def srd(self, sreg, plo, nbytes, add=0):
        if add:
            self(f"s_add_u32 s{sreg}, s{plo}, {add}")
            self(f"s_addc_u32 s{sreg+1}, s{plo+1}, 0")
        else:
            self(f"s_mov_b32 s{sreg}, s{plo}")
            self(f"s_mov_b32 s{sreg+1}, s{plo+1}")
        self(f"s_mov_b32 s{sreg+2}, {nbytes}")
        self(f"s_mov_b32 s{sreg+3}, 0x00020000")

    def text(self):
        return "\n".join(self.L)


def kernel_wrap(k, nvgpr, nsgpr=102, accum=None):
    accum = accum or ((nvgpr + 3) // 4 * 4)
    return f""".globl {k.name}
.p2align 8
.type {k.name},@function
{k.name}:
{k.text()}
    s_endpgm
""", f""".amdhsa_kernel {k.name}
  .amdhsa_next_free_vgpr {nvgpr}
  .amdhsa_next_free_sgpr {nsgpr}
  .amdhsa_accum_offset {accum}
  .amdhsa_group_segment_fixed_size 0
  .amdhsa_kernarg_size 96
  .amdhsa_user_sgpr_count 2
  .amdhsa_user_sgpr_kernarg_segment_ptr 1
  .amdhsa_system_sgpr_workgroup_id_x 1
.end_amdhsa_kernel
"""


def gen_ln():
    k = K("ln_kernel")
    k("s_cmp_ge_u32 s2, 64")
    k("s_cbranch_scc1 .ln_end")
    k(f"s_load_dwordx2 s[4:5], s[0:1], {KA['x']}")
    k(f"s_load_dwordx2 s[6:7], s[0:1], {KA['ws']}")
    k("s_waitcnt lgkmcnt(0)")
    k.srd(8, 4, S * D * 2)
    k.srd(12, 6, S * D * 2, add=WS_XN)
    k("v_lshrrev_b32 v1, 3, v0")
    k("s_lshl_b32 s3, s2, 5")
    k("v_add_u32 v1, s3, v1")
    k("v_and_b32 v2, 7, v0")
    k("v_mul_u32_u24 v1, 1152, v1")
    k("v_lshl_add_u32 v1, v2, 4, v1")
    for i in range(9):
        k(f"buffer_load_dwordx4 v[{8+4*i}:{11+4*i}], v1, s[8:11], 0 offen offset:{128*i}")
    k("s_waitcnt vmcnt(0)")
    for i in range(36):
        k(f"v_lshlrev_b32 v{48+2*i}, 16, v{8+i}")
        k(f"v_and_b32 v{49+2*i}, 0xffff0000, v{8+i}")
    k("v_add_f32 v2, v48, v49")
    for i in range(2, 72):
        k(f"v_add_f32 v2, v2, v{48+i}")

    def red8(reg):
        k.nop(2)
        k(f"v_add_f32_dpp v3, v{reg}, v{reg} quad_perm:[1,0,3,2] row_mask:0xf bank_mask:0xf")
        k.nop(2)
        k(f"v_add_f32_dpp v{reg}, v3, v3 quad_perm:[2,3,0,1] row_mask:0xf bank_mask:0xf")
        k.nop(2)
        k(f"v_add_f32_dpp v3, v{reg}, v{reg} row_half_mirror row_mask:0xf bank_mask:0xf")
        k(f"v_mov_b32 v{reg}, v3")
    red8(2)
    k("v_mul_f32 v2, 0x3ae38e39, v2")
    k("v_sub_f32 v4, v48, v2")
    k("v_mul_f32 v5, v4, v4")
    for i in range(1, 72):
        k(f"v_sub_f32 v4, v{48+i}, v2")
        k("v_fmac_f32 v5, v4, v4")
    red8(5)
    k("v_mul_f32 v5, 0x3ae38e39, v5")
    k("v_cvt_pk_bf16_f32 v6, v2, v5")
    k("v_lshlrev_b32 v2, 16, v6")
    k("v_and_b32 v5, 0xffff0000, v6")
    k("v_add_f32 v5, 0x3727c5ac, v5")
    k("v_cvt_pk_bf16_f32 v6, v5, v5")
    k("v_lshlrev_b32 v5, 16, v6")
    k("v_sqrt_f32 v5, v5")
    k.nop(1)
    k("v_cvt_pk_bf16_f32 v6, v5, v5")
    k("v_lshlrev_b32 v5, 16, v6")
    k("v_rcp_f32 v5, v5")
    k.nop(1)
    for i in range(36):
        a, b = 48 + 2 * i, 49 + 2 * i
        k(f"v_sub_f32 v{a}, v{a}, v2")
        k(f"v_sub_f32 v{b}, v{b}, v2")
        k(f"v_cvt_pk_bf16_f32 v4, v{a}, v{b}")
        k(f"v_lshlrev_b32 v{a}, 16, v4")
        k(f"v_and_b32 v{b}, 0xffff0000, v4")
        k(f"v_mul_f32 v{a}, v{a}, v5")
        k(f"v_mul_f32 v{b}, v{b}, v5")
        k(f"v_cvt_pk_bf16_f32 v{8+i}, v{a}, v{b}")
    for i in range(9):
        k(f"buffer_store_dwordx4 v[{8+4*i}:{11+4*i}], v1, s[12:15], 0 offen offset:{128*i}")
    k.label(".ln_end")
    return k


class GemmCfg:
    def __init__(self, BM, BN, BK):
        self.BM, self.BN, self.BK = BM, BN, BK
        self.WM = BM // 64
        self.WN = BN // 64
        assert BM % 64 == 0 and BN % 64 == 0 or (BN == 192)
        self.WN = BN // 64
        self.SA = BK * 2 + 16
        sb = BN * 2
        while (sb // 64) % 2 == 0 or sb % 64:
            sb += 64 if sb % 64 == 0 else (64 - sb % 64)
        self.SB = sb
        self.Abytes = BM * self.SA
        self.Bbytes = BK * self.SB
        self.buf = self.Abytes + self.Bbytes
        self.lds = 2 * self.buf
        self.CA = BK // 8
        self.ra = 256 // self.CA
        self.passA = BM // self.ra
        self.CB = BN // 8
        self.passB = BK * self.CB // 256
        assert BM % self.ra == 0 and (BK * self.CB) % 256 == 0


def magic_div(d, maxv):
    for s in range(8, 24):
        m = (1 << s) // d + 1
        if all((x * m) >> s == x // d for x in range(maxv)) and maxv * m < (1 << 32):
            return m, s
    raise Exception("no magic")


def gemm_setup(k, cfg, R):
    c = cfg
    lda, ldb = R['lda'], R['ldb']
    t = R['tmp']
    sh = c.CA.bit_length() - 1
    k(f"v_and_b32 v{t}, {c.CA-1}, v0")
    k(f"v_lshrrev_b32 v{t+1}, {sh}, v0")
    k(f"v_add_u32 v{t+2}, s{R['sm0']}, v{t+1}")
    k(f"s_mov_b32 s{R['stmp']}, {lda}")
    k(f"v_mul_lo_u32 v{t+2}, v{t+2}, s{R['stmp']}")
    for p in range(c.passA):
        k(f"v_lshl_add_u32 v{R['gA']+p}, v{t}, 4, v{t+2}")
        if p:
            k(f"v_add_u32 v{R['gA']+p}, {p*c.ra*lda}, v{R['gA']+p}")
    k(f"v_mul_u32_u24 v{t+1}, {c.SA}, v{t+1}")
    k(f"v_lshl_add_u32 v{R['wA']}, v{t}, 4, v{t+1}")
    m, s = magic_div(c.CB, c.passB * 256)
    for p in range(c.passB):
        k(f"v_add_u32 v{t}, {p*256}, v0")
        k(f"s_mov_b32 s{R['stmp']}, {m}")
        k(f"v_mul_lo_u32 v{t+1}, v{t}, s{R['stmp']}")
        k(f"v_lshrrev_b32 v{t+1}, {s}, v{t+1}")
        k(f"v_mul_u32_u24 v{t+2}, {c.CB}, v{t+1}")
        k(f"v_sub_u32 v{t+2}, v{t}, v{t+2}")
        k(f"s_mov_b32 s{R['stmp']}, {ldb}")
        k(f"v_mul_lo_u32 v{t+3}, v{t+1}, s{R['stmp']}")
        k(f"v_lshl_add_u32 v{t+3}, v{t+2}, 4, v{t+3}")
        k(f"s_lshl_b32 s{R['stmp']}, s{R['sn0']}, 1")
        k(f"v_add_u32 v{R['gB']+p}, s{R['stmp']}, v{t+3}")
        k(f"v_mul_u32_u24 v{t+1}, {c.SB}, v{t+1}")
        k(f"v_lshl_add_u32 v{t+1}, v{t+2}, 4, v{t+1}")
        k(f"v_add_u32 v{R['wB']+p}, {c.Abytes}, v{t+1}")
    k(f"v_and_b32 v{t}, 63, v0")
    k(f"v_lshrrev_b32 v{t+1}, 6, v0")
    k(f"v_lshrrev_b32 v{t+2}, 1, v{t+1}")
    k(f"v_mul_u32_u24 v{t+2}, {c.BM//2}, v{t+2}")
    k(f"v_and_b32 v{t+3}, 31, v{t}")
    k(f"v_add_u32 v{t+2}, v{t+2}, v{t+3}")
    k(f"v_mul_u32_u24 v{t+2}, {c.SA}, v{t+2}")
    k(f"v_lshrrev_b32 v{t+3}, 5, v{t}")
    k(f"v_lshl_add_u32 v{R['rX']}, v{t+3}, 4, v{t+2}")
    k(f"v_lshrrev_b32 v{t+2}, 5, v{t}")
    k(f"v_lshlrev_b32 v{t+2}, 3, v{t+2}")
    k(f"v_bfe_u32 v{t+3}, v{t}, 2, 2")
    k(f"v_add_u32 v{t+2}, v{t+2}, v{t+3}")
    k(f"v_mul_u32_u24 v{t+2}, {c.SB}, v{t+2}")
    k(f"v_and_b32 v{t+1}, 1, v{t+1}")
    k(f"v_mul_u32_u24 v{t+1}, {c.BN//2}, v{t+1}")
    k(f"v_bfe_u32 v{t+3}, v{t}, 4, 1")
    k(f"v_lshl_add_u32 v{t+1}, v{t+3}, 4, v{t+1}")
    k(f"v_and_b32 v{t+3}, 3, v{t}")
    k(f"v_lshl_add_u32 v{t+1}, v{t+3}, 2, v{t+1}")
    k(f"v_lshl_add_u32 v{t+2}, v{t+1}, 1, v{t+2}")
    k(f"v_add_u32 v{R['rW']}, {c.Abytes}, v{t+2}")


def gemm_loads(k, cfg, R):
    c = cfg
    for p in range(c.passA):
        k(f"buffer_load_dwordx4 v[{R['stg']+4*p}:{R['stg']+4*p+3}], v{R['gA']+p}, s[{R['srdA']}:{R['srdA']+3}], s{R['sofA']} offen")
    for p in range(c.passB):
        q = c.passA + p
        k(f"buffer_load_dwordx4 v[{R['stg']+4*q}:{R['stg']+4*q+3}], v{R['gB']+p}, s[{R['srdB']}:{R['srdB']+3}], s{R['sofB']} offen")
    k(f"s_add_u32 s{R['sofA']}, s{R['sofA']}, {c.BK*2}")
    k(f"s_add_u32 s{R['sofB']}, s{R['sofB']}, {c.BK*R['ldb']}")


def gemm_writes(k, cfg, R, b):
    c = cfg
    for p in range(c.passA):
        k(f"ds_write_b128 v{R['wA']}, v[{R['stg']+4*p}:{R['stg']+4*p+3}] offset:{b*c.buf + p*c.ra*c.SA}")
    for p in range(c.passB):
        q = c.passA + p
        k(f"ds_write_b128 v{R['wB']+p}, v[{R['stg']+4*q}:{R['stg']+4*q+3}] offset:{b*c.buf}")


def gemm_compute(k, cfg, R, b, acc):
    c = cfg
    nks = c.BK // 16
    fr = R['frag']
    per = 4 * (c.WM + c.WN)
    for ks in range(nks):
        base = fr + ks * per
        for im in range(c.WM):
            k(f"ds_read_b128 v[{base+4*im}:{base+4*im+3}], v{R['rX']} offset:{b*c.buf + im*32*c.SA + ks*32}")
        for i_n in range(c.WN):
            r = base + 4 * c.WM + 4 * i_n
            off = b * c.buf + ks * 16 * c.SB + i_n * 64
            k(f"ds_read_b64_tr_b16 v[{r}:{r+1}], v{R['rW']} offset:{off}")
            k(f"ds_read_b64_tr_b16 v[{r+2}:{r+3}], v{R['rW']} offset:{off + 4*c.SB}")
    nrd = c.WM + 2 * c.WN
    for ks in range(nks):
        base = fr + ks * per
        k(f"s_waitcnt lgkmcnt({(nks-1-ks)*nrd})")
        for i_n in range(c.WN):
            for im in range(c.WM):
                a = acc + 16 * (i_n * c.WM + im)
                wf = base + 4 * c.WM + 4 * i_n
                xf = base + 4 * im
                k(f"v_mfma_f32_32x32x16_bf16 v[{a}:{a+15}], v[{wf}:{wf+3}], v[{xf}:{xf+3}], v[{a}:{a+15}]")


def gemm_mainloop(k, cfg, R, nst, acc, tag):
    c = cfg
    assert nst % 2 == 0 and nst >= 2
    gemm_loads(k, c, R)
    k("s_waitcnt vmcnt(0)")
    gemm_writes(k, c, R, 0)
    k("s_waitcnt lgkmcnt(0)")
    k("s_barrier")
    npairs = nst // 2 - 1
    if npairs > 0:
        k(f"s_mov_b32 s{R['scnt']}, {npairs}")
        lab = f".{tag}_loop"
        k.label(lab)
        for b in range(2):
            gemm_loads(k, c, R)
            gemm_compute(k, c, R, b, acc)
            k("s_waitcnt vmcnt(0)")
            gemm_writes(k, c, R, 1 - b)
            k("s_waitcnt lgkmcnt(0)")
            k("s_barrier")
        k(f"s_sub_u32 s{R['scnt']}, s{R['scnt']}, 1")
        k(f"s_cmp_lg_u32 s{R['scnt']}, 0")
        k(f"s_cbranch_scc1 {lab}")
    gemm_loads(k, c, R)
    gemm_compute(k, c, R, 0, acc)
    k("s_waitcnt vmcnt(0)")
    gemm_writes(k, c, R, 1)
    k("s_waitcnt lgkmcnt(0)")
    k("s_barrier")
    gemm_compute(k, c, R, 1, acc)


def zero_acc(k, acc, n):
    for i in range(n):
        k(f"v_mov_b32 v{acc+i}, 0")


class Gemm2Cfg:
    def __init__(self, BM, BN, BK, NS):
        self.BM, self.BN, self.BK, self.NS = BM, BN, BK, NS
        self.WM = BM // 64
        self.WN = BN // 64
        self.RA = BK * 2
        self.RB = BN * 2
        assert self.RB % 128 == 0
        self.Abytes = BM * self.RA
        self.Bbytes = BK * self.RB
        self.stage = self.Abytes + self.Bbytes
        self.lds = NS * self.stage
        self.pA = self.Abytes // 1024 // 4
        self.pB = self.Bbytes // 1024 // 4
        assert self.Abytes % 4096 == 0 and self.Bbytes % 4096 == 0
        self.P = self.pA + self.pB

    def aswz(self):
        return (2, 3) if self.RA == 64 else (1, 7)


def g2_setup(k, c, R):
    lda, ldb = R['lda'], R['ldb']
    t = R['tmp']
    k(f"v_and_b32 v{t}, 63, v0")
    k(f"v_lshrrev_b32 v{t+1}, 6, v0")
    CA = c.RA // 16
    sh, mk = c.aswz()
    for p in range(c.pA):
        k(f"v_mul_u32_u24 v{t+2}, {c.pA*64}, v{t+1}")
        k(f"v_add_u32 v{t+2}, v{t+2}, v{t}")
        if p:
            k(f"v_add_u32 v{t+2}, {p*64}, v{t+2}")
        k(f"v_lshrrev_b32 v{t+3}, {CA.bit_length()-1}, v{t+2}")
        k(f"v_and_b32 v{t+2}, {CA-1}, v{t+2}")
        k(f"v_bfe_u32 v{t+4}, v{t+3}, {sh}, {mk.bit_length()}")
        k(f"v_xor_b32 v{t+2}, v{t+2}, v{t+4}")
        k(f"v_add_u32 v{t+3}, s{R['sm0']}, v{t+3}")
        k(f"s_mov_b32 s{R['stmp']}, {lda}")
        k(f"v_mul_lo_u32 v{t+3}, v{t+3}, s{R['stmp']}")
        k(f"v_lshl_add_u32 v{R['gA']+p}, v{t+2}, 4, v{t+3}")
    CB = c.RB // 16
    m, s = magic_div(CB, c.pB * 256)
    for p in range(c.pB):
        k(f"v_mul_u32_u24 v{t+2}, {c.pB*64}, v{t+1}")
        k(f"v_add_u32 v{t+2}, v{t+2}, v{t}")
        if p:
            k(f"v_add_u32 v{t+2}, {p*64}, v{t+2}")
        k(f"s_mov_b32 s{R['stmp']}, {m}")
        k(f"v_mul_lo_u32 v{t+3}, v{t+2}, s{R['stmp']}")
        k(f"v_lshrrev_b32 v{t+3}, {s}, v{t+3}")
        k(f"v_mul_u32_u24 v{t+4}, {CB}, v{t+3}")
        k(f"v_sub_u32 v{t+2}, v{t+2}, v{t+4}")
        k(f"v_bfe_u32 v{t+4}, v{t+3}, 1, 1")
        k(f"v_lshlrev_b32 v{t+4}, 2, v{t+4}")
        k(f"v_xor_b32 v{t+2}, v{t+2}, v{t+4}")
        k(f"s_mov_b32 s{R['stmp']}, {ldb}")
        k(f"v_mul_lo_u32 v{t+3}, v{t+3}, s{R['stmp']}")
        k(f"v_lshl_add_u32 v{t+3}, v{t+2}, 4, v{t+3}")
        k(f"s_lshl_b32 s{R['stmp']}, s{R['sn0']}, 1")
        k(f"v_add_u32 v{R['gB']+p}, s{R['stmp']}, v{t+3}")
    k("s_nop 0")
    k(f"v_readfirstlane_b32 s{R['swave']}, v{t+1}")
    k(f"s_mul_i32 s{R['sdA']}, s{R['swave']}, {c.pA*1024}")
    k(f"s_mul_i32 s{R['sdB']}, s{R['swave']}, {c.pB*1024}")
    k(f"s_add_u32 s{R['sdB']}, s{R['sdB']}, {c.Abytes}")
    k(f"v_lshrrev_b32 v{t+2}, 1, v{t+1}")
    k(f"v_mul_u32_u24 v{t+2}, {c.BM//2}, v{t+2}")
    k(f"v_and_b32 v{t+3}, 31, v{t}")
    k(f"v_add_u32 v{t+2}, v{t+2}, v{t+3}")
    k(f"v_bfe_u32 v{t+3}, v{t+2}, {sh}, {mk.bit_length()}")
    k(f"v_lshrrev_b32 v{t+4}, 5, v{t}")
    nks = c.BK // 16
    for ks in range(nks):
        k(f"v_add_u32 v{t+5}, {2*ks}, v{t+4}")
        k(f"v_xor_b32 v{t+5}, v{t+5}, v{t+3}")
        k(f"v_lshlrev_b32 v{t+5}, 4, v{t+5}")
        k(f"v_mul_u32_u24 v{R['rX']+ks}, {c.RA}, v{t+2}")
        k(f"v_add_u32 v{R['rX']+ks}, v{R['rX']+ks}, v{t+5}")
    k(f"v_lshrrev_b32 v{t+2}, 5, v{t}")
    k(f"v_lshlrev_b32 v{t+2}, 3, v{t+2}")
    k(f"v_bfe_u32 v{t+3}, v{t}, 2, 2")
    k(f"v_add_u32 v{t+2}, v{t+2}, v{t+3}")
    k(f"v_mul_u32_u24 v{t+2}, {c.RB}, v{t+2}")
    k(f"v_bfe_u32 v{t+3}, v{t}, 4, 1")
    k(f"v_lshl_add_u32 v{t+2}, v{t+3}, 5, v{t+2}")
    k(f"v_and_b32 v{t+3}, 3, v{t}")
    k(f"v_lshl_add_u32 v{t+2}, v{t+3}, 3, v{t+2}")
    k(f"v_add_u32 v{t+2}, {c.Abytes}, v{t+2}")
    k(f"v_and_b32 v{t+3}, 1, v{t+1}")
    k(f"v_mul_u32_u24 v{t+3}, {c.WN}, v{t+3}")
    k(f"v_bfe_u32 v{t+4}, v{t}, 3, 1")
    for i_n in range(c.WN):
        k(f"v_add_u32 v{t+5}, {i_n}, v{t+3}")
        k(f"v_xor_b32 v{t+5}, v{t+5}, v{t+4}")
        k(f"v_lshl_add_u32 v{R['rW']+i_n}, v{t+5}, 6, v{t+2}")
    if c.lds > 65536:
        for ks in range(nks):
            k(f"v_add_u32 v{R['rXh']+ks}, 0x8000, v{R['rX']+ks}")
        for i_n in range(c.WN):
            k(f"v_add_u32 v{R['rWh']+i_n}, 0x8000, v{R['rW']+i_n}")


def g2_dma(k, c, R, slot):
    base = slot * c.stage
    for p in range(c.pA):
        k(f"s_add_u32 m0, s{R['sdA']}, {base + p*1024}")
        k("s_nop 0")
        k(f"buffer_load_dwordx4 v{R['gA']+p}, s[{R['srdA']}:{R['srdA']+3}], s{R['sofA']} offen lds")
    for p in range(c.pB):
        k(f"s_add_u32 m0, s{R['sdB']}, {base + p*1024}")
        k("s_nop 0")
        k(f"buffer_load_dwordx4 v{R['gB']+p}, s[{R['srdB']}:{R['srdB']+3}], s{R['sofB']} offen lds")
    k(f"s_add_u32 s{R['sofA']}, s{R['sofA']}, {c.BK*2}")
    k(f"s_add_u32 s{R['sofB']}, s{R['sofB']}, {c.BK*R['ldb']}")


def g2_compute(k, c, R, slot, acc):
    nks = c.BK // 16
    fr = R['frag']
    per = 4 * (c.WM + c.WN)
    base0 = slot * c.stage
    hi = base0 >= 32768
    rX = R['rXh'] if hi else R['rX']
    rW = R['rWh'] if hi else R['rW']
    if hi:
        base0 -= 32768
    for ks in range(nks):
        base = fr + ks * per
        for im in range(c.WM):
            k(f"ds_read_b128 v[{base+4*im}:{base+4*im+3}], v{rX+ks} offset:{base0 + im*32*c.RA}")
        for i_n in range(c.WN):
            r = base + 4 * c.WM + 4 * i_n
            off = base0 + ks * 16 * c.RB
            k(f"ds_read_b64_tr_b16 v[{r}:{r+1}], v{rW+i_n} offset:{off}")
            k(f"ds_read_b64_tr_b16 v[{r+2}:{r+3}], v{rW+i_n} offset:{off + 4*c.RB}")
    nrd = c.WM + 2 * c.WN
    for ks in range(nks):
        base = fr + ks * per
        k(f"s_waitcnt lgkmcnt({(nks-1-ks)*nrd})")
        for i_n in range(c.WN):
            for im in range(c.WM):
                a = acc + 16 * (i_n * c.WM + im)
                wf = base + 4 * c.WM + 4 * i_n
                xf = base + 4 * im
                k(f"v_mfma_f32_32x32x16_bf16 v[{a}:{a+15}], v[{wf}:{wf+3}], v[{xf}:{xf+3}], v[{a}:{a+15}]")


def g2_mainloop(k, c, R, nst, acc, tag, compute=None):
    NS, P = c.NS, c.P
    compute = compute or g2_compute
    assert nst >= NS
    for s_ in range(NS - 1):
        g2_dma(k, c, R, s_)

    def stage(t_mod, issue, inflight_after):
        k(f"s_waitcnt vmcnt({inflight_after*P})")
        k("s_barrier")
        if issue:
            g2_dma(k, c, R, (t_mod + NS - 1) % NS)
        compute(k, c, R, t_mod, acc)

    nsteady = nst - NS + 1
    ngroups = nsteady // NS
    t = 0
    if ngroups >= 2:
        k(f"s_mov_b32 s{R['scnt']}, {ngroups}")
        lab = f".{tag}_loop"
        k.label(lab)
        for j in range(NS):
            stage(j, True, NS - 2)
        k(f"s_sub_u32 s{R['scnt']}, s{R['scnt']}, 1")
        k(f"s_cmp_lg_u32 s{R['scnt']}, 0")
        k(f"s_cbranch_scc1 {lab}")
        t = ngroups * NS
    while t < nst:
        issue = t + NS - 1 < nst
        inflight = min(NS - 2, nst - 1 - t)
        stage(t % NS, issue, inflight)
        t += 1


G1 = Gemm2Cfg(128, 192, 32, 4)
G1_NQ = 1728 // 192
G1_NF = 4608 // 192
G1_MT = S // 128
G1_WGS = G1_MT * (G1_NQ + G1_NF)


def gen_gemm1():
    c = G1
    k = K("gemm1_kernel")
    nacc = 16 * c.WM * c.WN
    R = dict(sm0=40, sn0=41, stmp=42, srdA=16, srdB=20, sofA=44, sofB=45, scnt=46, swave=47, sdA=48, sdB=49,
             gA=1, gB=4, rX=7, rW=9, rXh=12, rWh=14, tmp=17, frag=24, lda=1152)
    acc = 64
    k(f"s_cmp_ge_u32 s2, {G1_WGS}")
    k("s_cbranch_scc1 .g1_end")
    k(f"s_load_dwordx2 s[4:5], s[0:1], {KA['wqkv']}")
    k(f"s_load_dwordx2 s[6:7], s[0:1], {KA['w1']}")
    k(f"s_load_dwordx2 s[8:9], s[0:1], {KA['ws']}")
    k(f"s_load_dwordx2 s[10:11], s[0:1], {KA['b1']}")
    k("s_and_b32 s3, s2, 7")
    k("s_mul_i32 s3, s3, 66")
    k("s_lshr_b32 s12, s2, 3")
    k("s_add_u32 s3, s3, s12")
    k("s_lshr_b32 s12, s3, 4")
    k("s_and_b32 s3, s3, 15")
    k(f"s_lshl_b32 s{R['sm0']}, s3, 7")
    k("s_waitcnt lgkmcnt(0)")
    k.srd(16, 8, S * D * 2, add=WS_XN)
    k("s_cmp_ge_u32 s12, 9")
    k("s_cbranch_scc1 .g1_ffn")
    k.srd(20, 4, 576 * 1728 * 2)
    k(f"s_mul_i32 s{R['sn0']}, s12, 192")
    R['ldb'] = 1728 * 2
    k(f"s_mov_b32 s{R['sofA']}, 0")
    k(f"s_mov_b32 s{R['sofB']}, 0")
    g2_setup(k, c, R)
    zero_acc(k, acc, nacc)
    g2_mainloop(k, c, R, 576 // c.BK, acc, "g1q")
    k.nop(16)
    k.srd(24, 8, S * 1728 * 2, add=WS_QKV)
    epilogue_store(k, c, R, acc, ldc=1728 * 2, mode="plain")
    k("s_branch .g1_end")
    k.label(".g1_ffn")
    k.srd(20, 6, 576 * 4608 * 2)
    k("s_sub_u32 s12, s12, 9")
    k(f"s_mul_i32 s{R['sn0']}, s12, 192")
    R['ldb'] = 4608 * 2
    k(f"s_mov_b32 s{R['sofA']}, 0")
    k(f"s_mov_b32 s{R['sofB']}, 0")
    g2_setup(k, c, R)
    zero_acc(k, acc, nacc)
    g2_mainloop(k, c, R, 576 // c.BK, acc, "g1f")
    k.nop(16)
    k.srd(24, 8, S * 4608 * 2, add=WS_H)
    k.srd(28, 10, 4608 * 2)
    epilogue_store(k, c, R, acc, ldc=4608 * 2, mode="gelu")
    k.label(".g1_end")
    return k


def epilogue_store(k, c, R, acc, ldc, mode):
    t = R['tmp']
    k(f"v_lshrrev_b32 v{t+1}, 6, v0")
    k(f"v_lshrrev_b32 v{t+2}, 1, v{t+1}")
    k(f"v_mul_u32_u24 v{t+2}, {c.BM//2}, v{t+2}")
    k(f"v_and_b32 v{t+3}, 31, v0")
    k(f"v_add_u32 v{t+2}, v{t+2}, v{t+3}")
    k(f"v_add_u32 v{t+2}, s{R['sm0']}, v{t+2}")
    k(f"s_mov_b32 s{R['stmp']}, {ldc}")
    k(f"v_mul_lo_u32 v{t}, v{t+2}, s{R['stmp']}")
    k(f"v_and_b32 v{t+1}, 1, v{t+1}")
    k(f"v_mul_u32_u24 v{t+1}, {c.BN//2}, v{t+1}")
    k(f"v_bfe_u32 v{t+3}, v0, 5, 1")
    k(f"v_lshl_add_u32 v{t+1}, v{t+3}, 2, v{t+1}")
    k(f"v_add_u32 v{t+1}, s{R['sn0']}, v{t+1}")
    k(f"v_lshl_add_u32 v{t}, v{t+1}, 1, v{t}")
    bt = R['frag']
    if mode == "gelu":
        k(f"v_lshlrev_b32 v{t+1}, 1, v{t+1}")
        for i_n in range(c.WN):
            for g in range(4):
                r = bt + 2 * (i_n * 4 + g)
                k(f"buffer_load_dwordx2 v[{r}:{r+1}], v{t+1}, s[28:31], 0 offen offset:{(i_n*32+8*g)*2}")
        k("s_waitcnt vmcnt(0)")
    for i_n in range(c.WN):
        for g in range(4):
            if mode == "gelu":
                rb = bt + 2 * (i_n * 4 + g)
                bb = bt + 32
                k(f"v_lshlrev_b32 v{bb}, 16, v{rb}")
                k(f"v_and_b32 v{bb+1}, 0xffff0000, v{rb}")
                k(f"v_lshlrev_b32 v{bb+2}, 16, v{rb+1}")
                k(f"v_and_b32 v{bb+3}, 0xffff0000, v{rb+1}")
            for im in range(c.WM):
                a = acc + 16 * (i_n * c.WM + im) + 4 * g
                if mode == "gelu":
                    for j in range(4):
                        gelu1(k, a + j, bb + j, bb + 4)
                k(f"v_cvt_pk_bf16_f32 v{a}, v{a}, v{a+1}")
                k(f"v_cvt_pk_bf16_f32 v{a+1}, v{a+2}, v{a+3}")
                off = im * 32 * ldc + (i_n * 32 + 8 * g) * 2
                if off < 4096:
                    k(f"buffer_store_dwordx2 v[{a}:{a+1}], v{t}, s[24:27], 0 offen offset:{off}")
                else:
                    k(f"v_add_u32 v{t+2}, {off}, v{t}")
                    k(f"buffer_store_dwordx2 v[{a}:{a+1}], v{t+2}, s[24:27], 0 offen")


C_G0 = -2.0 * 0.7978845608028654 * 1.4426950408889634
C_G1 = C_G0 * 0.044715


def f32hex(x):
    import struct
    return hex(struct.unpack("<I", struct.pack("<f", x))[0])


def gelu1(k, a, b, t):
    k(f"v_add_f32 v{a}, v{a}, v{b}")
    k(f"v_mul_f32 v{t}, v{a}, v{a}")
    k(f"v_mov_b32 v{t+1}, {f32hex(C_G0)}")
    k(f"v_fmac_f32 v{t+1}, {f32hex(C_G1)}, v{t}")
    k(f"v_mul_f32 v{t}, v{a}, v{t+1}")
    k(f"v_exp_f32 v{t}, v{t}")
    k.nop(1)
    k(f"v_add_f32 v{t}, 1.0, v{t}")
    k(f"v_rcp_f32 v{t}, v{t}")
    k.nop(1)
    k(f"v_mul_f32 v{a}, v{a}, v{t}")


LOG2E = 1.4426950408889634
ATT_W = 0
ATT_PHIT = 2048
ATT_VT = 2048 + 64 * 528
ATT_LDS_A = ATT_VT + 32 * 528
ATT_KV = 2048
ATT_LDS_B = ATT_KV + 24 * 256


def att_load_w(k, sh):
    k("v_cmp_gt_u32 vcc, 162, v0")
    k("s_and_saveexec_b64 s[40:41], vcc")
    k("s_cbranch_execz .L%d" % id(k) + "w")
    k("v_lshlrev_b32 v1, 2, v0")
    k(f"buffer_load_dword v2, v1, s[8:11], s{sh} offen")
    k("s_waitcnt vmcnt(0)")
    k("v_lshlrev_b32 v4, 16, v2")
    k("v_and_b32 v5, 0xffff0000, v2")
    k("v_lshlrev_b32 v1, 3, v0")
    k(f"ds_write_b64 v1, v[4:5] offset:{ATT_W}")
    k.label(".L%d" % id(k) + "w")
    k("s_mov_b64 exec, s[40:41]")


def att_feature(k, src, acc, wt, res):
    for i in range(9):
        k(f"v_lshlrev_b32 v{res+2*i}, 16, v{src+i}")
        k(f"v_and_b32 v{res+2*i+1}, 0xffff0000, v{src+i}")
    k(f"v_mov_b32 v{wt+18}, 0")
    for d in range(18):
        base = ATT_W + d * 72
        k(f"ds_read_b64 v[{wt}:{wt+1}], v{wt+18} offset:{base}")
        for q in range(4):
            k(f"ds_read_b64 v[{wt+2+4*q}:{wt+3+4*q}], v{wt+18} offset:{base+8+16*q}")
            k(f"ds_read_b64 v[{wt+4+4*q}:{wt+5+4*q}], v{wt+18} offset:{base+16+16*q}")
        k("s_waitcnt lgkmcnt(0)")
        for f in range(18):
            if d == 0:
                k(f"v_mul_f32 v{acc+f}, v{res+d}, v{wt+f}")
            else:
                k(f"v_fmac_f32 v{acc+f}, v{res+d}, v{wt+f}")
    for i in range(9):
        k(f"v_cvt_pk_bf16_f32 v{wt}, v{acc+2*i}, v{acc+2*i+1}")
        k(f"v_lshlrev_b32 v{acc+2*i}, 16, v{wt}")
        k(f"v_and_b32 v{acc+2*i+1}, 0xffff0000, v{wt}")
    k(f"v_max_f32 v{wt}, v{acc}, v{acc+1}")
    k(f"v_min_f32 v{wt+1}, v{acc}, v{acc+1}")
    for f in range(2, 18):
        k(f"v_max_f32 v{wt}, v{wt}, v{acc+f}")
        k(f"v_min_f32 v{wt+1}, v{wt+1}, v{acc+f}")
    k(f"v_mul_f32 v{wt}, {f32hex(LOG2E)}, v{wt}")
    k(f"v_mul_f32 v{wt+1}, {f32hex(LOG2E)}, v{wt+1}")
    k(f"v_mov_b32 v{wt+2}, {f32hex(LOG2E)}")
    for f in range(18):
        k(f"v_fma_f32 v{res+f}, v{acc+f}, v{wt+2}, -v{wt}")
        k(f"v_fma_f32 v{res+18+f}, -v{acc+f}, v{wt+2}, v{wt+1}")
    for f in range(36):
        k(f"v_exp_f32 v{res+f}, v{res+f}")
    k.nop(1)
    k(f"v_add_f32 v{wt}, v{res}, v{res+1}")
    k(f"v_add_f32 v{wt+1}, v{res+18}, v{res+19}")
    for f in range(2, 18):
        k(f"v_add_f32 v{wt}, v{wt}, v{res+f}")
        k(f"v_add_f32 v{wt+1}, v{wt+1}, v{res+18+f}")
    k(f"v_rcp_f32 v{wt}, v{wt}")
    k(f"v_rcp_f32 v{wt+1}, v{wt+1}")
    k.nop(1)
    for f in range(18):
        k(f"v_mul_f32 v{res+f}, v{res+f}, v{wt}")
        k(f"v_mul_f32 v{res+18+f}, v{res+18+f}, v{wt+1}")
    for i in range(18):
        k(f"v_cvt_pk_bf16_f32 v{acc+i}, v{res+2*i}, v{res+2*i+1}")
        k(f"v_lshlrev_b32 v{res+2*i}, 16, v{acc+i}")
        k(f"v_and_b32 v{res+2*i+1}, 0xffff0000, v{acc+i}")


def gen_attn_a():
    k = K("attna_kernel")
    k("s_cmp_ge_u32 s2, 256")
    k("s_cbranch_scc1 .aa_end")
    k(f"s_load_dwordx2 s[4:5], s[0:1], {KA['wphi']}")
    k(f"s_load_dwordx2 s[6:7], s[0:1], {KA['ws']}")
    k("s_lshr_b32 s20, s2, 3")
    k("s_and_b32 s21, s2, 7")
    k("s_mul_i32 s22, s20, 648")
    k("s_waitcnt lgkmcnt(0)")
    k.srd(8, 4, 32 * 648)
    k.srd(12, 6, S * 1728 * 2, add=WS_QKV)
    k.srd(16, 6, 32 * 8 * 24 * 256, add=WS_KVP)
    att_load_w(k, 22)
    k("s_lshl_b32 s23, s21, 8")
    k("v_add_u32 v1, s23, v0")
    k("v_mul_u32_u24 v1, 3456, v1")
    k("s_mul_i32 s24, s20, 36")
    k("s_add_u32 s24, s24, 1152")
    k("v_add_u32 v1, s24, v1")
    k("buffer_load_dwordx4 v[4:7], v1, s[12:15], 0 offen")
    k("buffer_load_dwordx4 v[8:11], v1, s[12:15], 0 offen offset:16")
    k("buffer_load_dword v12, v1, s[12:15], 0 offen offset:32")
    k("buffer_load_dwordx4 v[16:19], v1, s[12:15], 0 offen offset:1152")
    k("buffer_load_dwordx4 v[20:23], v1, s[12:15], 0 offen offset:1168")
    k("buffer_load_dword v24, v1, s[12:15], 0 offen offset:1184")
    k("s_waitcnt vmcnt(0) lgkmcnt(0)")
    k("s_barrier")
    att_feature(k, src=4, acc=32, wt=52, res=80)
    k("v_lshlrev_b32 v2, 1, v0")
    for i in range(18):
        k(f"ds_write_b16 v2, v{32+i} offset:{ATT_PHIT + (2*i)*528}")
        k(f"ds_write_b16_d16_hi v2, v{32+i} offset:{ATT_PHIT + (2*i+1)*528}")
    for i in range(9):
        k(f"ds_write_b16 v2, v{16+i} offset:{ATT_VT + (2*i)*528}")
        k(f"ds_write_b16_d16_hi v2, v{16+i} offset:{ATT_VT + (2*i+1)*528}")
    k("v_mov_b32 v3, 0x3f80")
    k(f"ds_write_b16 v2, v3 offset:{ATT_VT + 18*528}")
    k("s_waitcnt lgkmcnt(0)")
    k("s_barrier")
    k("v_lshrrev_b32 v3, 6, v0")
    k("s_nop 0")
    k("v_readfirstlane_b32 s25, v3")
    k("s_nop 1")
    k("s_cmp_ge_u32 s25, 2")
    k("s_cbranch_scc1 .aa_end")
    k("v_and_b32 v4, 31, v0")
    k("v_mul_u32_u24 v5, 528, v4")
    k("v_bfe_u32 v6, v0, 5, 1")
    k("v_lshl_add_u32 v5, v6, 4, v5")
    k("s_mul_i32 s26, s25, 16896")
    k("v_add_u32 v7, s26, v5")
    for i in range(16):
        k(f"v_mov_b32 v{32+i}, 0")
    for ks in range(16):
        k(f"ds_read_b128 v[{64+8*(ks%4)}:{67+8*(ks%4)}], v5 offset:{ATT_VT + ks*32}")
        k(f"ds_read_b128 v[{68+8*(ks%4)}:{71+8*(ks%4)}], v7 offset:{ATT_PHIT + ks*32}")
        if ks % 4 == 3:
            k("s_waitcnt lgkmcnt(0)")
            for q in range(4):
                k(f"v_mfma_f32_32x32x16_bf16 v[32:47], v[{64+8*q}:{67+8*q}], v[{68+8*q}:{71+8*q}], v[32:47]")
    k.nop(16)
    k("s_mul_i32 s27, s2, 6144")
    k("v_lshlrev_b32 v8, 2, v4")
    k("v_lshl_add_u32 v8, v6, 10, v8")
    k("s_lshl_b32 s26, s25, 7")
    k("s_add_u32 s27, s27, s26")
    k("v_add_u32 v8, s27, v8")
    k("v_add_u32 v9, 4096, v8")
    for r in range(12):
        off = (r & 3) * 256 + (r >> 2) * 2048
        if off < 4096:
            k(f"buffer_store_dword v{32+r}, v8, s[16:19], 0 offen offset:{off}")
        else:
            k(f"buffer_store_dword v{32+r}, v9, s[16:19], 0 offen offset:{off-4096}")
    k.label(".aa_end")
    return k


def gen_attn_b():
    k = K("attnb_kernel")
    k("s_cmp_ge_u32 s2, 256")
    k("s_cbranch_scc1 .ab_end")
    k(f"s_load_dwordx2 s[4:5], s[0:1], {KA['wphi']}")
    k(f"s_load_dwordx2 s[6:7], s[0:1], {KA['ws']}")
    k("s_lshr_b32 s20, s2, 3")
    k("s_and_b32 s21, s2, 7")
    k("s_mul_i32 s22, s20, 648")
    k("s_waitcnt lgkmcnt(0)")
    k.srd(8, 4, 32 * 648)
    k.srd(12, 6, S * 1728 * 2, add=WS_QKV)
    k.srd(16, 6, 32 * 8 * 24 * 256, add=WS_KVP)
    k.srd(28, 6, S * 576 * 2, add=WS_O)
    att_load_w(k, 22)
    k("s_lshl_b32 s23, s21, 8")
    k("v_add_u32 v1, s23, v0")
    k("v_mul_u32_u24 v1, 3456, v1")
    k("s_mul_i32 s24, s20, 36")
    k("v_add_u32 v1, s24, v1")
    k("buffer_load_dwordx4 v[4:7], v1, s[12:15], 0 offen")
    k("buffer_load_dwordx4 v[8:11], v1, s[12:15], 0 offen offset:16")
    k("buffer_load_dword v12, v1, s[12:15], 0 offen offset:32")
    k("s_mul_i32 s25, s20, 49152")
    k("v_lshlrev_b32 v2, 2, v0")
    for p in range(6):
        for c in range(8):
            k(f"s_add_u32 s26, s25, {c*6144 + p*1024}")
            k(f"buffer_load_dword v{16+c}, v2, s[16:19], s26 offen")
        k("s_waitcnt vmcnt(0)")
        for c in range(1, 8):
            k(f"v_add_f32 v16, v16, v{16+c}")
        k("v_cvt_pk_bf16_f32 v17, v16, v16")
        k("v_lshlrev_b32 v17, 16, v17")
        k(f"ds_write_b32 v2, v17 offset:{ATT_KV + p*1024}")
    k("s_waitcnt vmcnt(0) lgkmcnt(0)")
    k("s_barrier")
    att_feature(k, src=4, acc=32, wt=52, res=80)
    k("v_mov_b32 v3, 0")
    for d in range(19):
        base = ATT_KV + d * 256
        for q in range(9):
            k(f"ds_read_b128 v[{120+4*q}:{123+4*q}], v3 offset:{base+16*q}")
        k("s_waitcnt lgkmcnt(0)")
        k(f"v_mul_f32 v{32+d}, v80, v120")
        for f in range(1, 36):
            k(f"v_fmac_f32 v{32+d}, v{80+f}, v{120+f}")
    k("v_cvt_pk_bf16_f32 v52, v50, v50")
    k("v_lshlrev_b32 v52, 16, v52")
    k("v_add_f32 v52, 0x358637bd, v52")
    k("v_cvt_pk_bf16_f32 v52, v52, v52")
    k("v_lshlrev_b32 v52, 16, v52")
    k("v_rcp_f32 v52, v52")
    k.nop(1)
    for i in range(9):
        a, b = 32 + 2 * i, 33 + 2 * i
        k(f"v_cvt_pk_bf16_f32 v53, v{a}, v{b}")
        k(f"v_lshlrev_b32 v{a}, 16, v53")
        k(f"v_and_b32 v{b}, 0xffff0000, v53")
        k(f"v_mul_f32 v{a}, v{a}, v52")
        k(f"v_mul_f32 v{b}, v{b}, v52")
        k(f"v_cvt_pk_bf16_f32 v{60+i}, v{a}, v{b}")
    k("v_add_u32 v1, s23, v0")
    k("v_mul_u32_u24 v1, 1152, v1")
    k("v_add_u32 v1, s24, v1")
    k("buffer_store_dwordx4 v[60:63], v1, s[28:31], 0 offen")
    k("buffer_store_dwordx4 v[64:67], v1, s[28:31], 0 offen offset:16")
    k("buffer_store_dword v68, v1, s[28:31], 0 offen offset:32")
    k.label(".ab_end")
    return k


G5 = GemmCfg(64, 64, 32)
G5_WGS = (S // 64) * 9


def gen_final():
    c = G5
    k = K("final_kernel")
    R = dict(sm0=40, sn0=41, stmp=42, srdA=16, srdB=20, sofA=44, sofB=45, scnt=46,
             gA=1, gB=4, wA=8, wB=9, rX=13, rW=14, tmp=16, stg=20, frag=40, lda=9216, ldb=1152)
    acc1, acc2 = 80, 96
    k(f"s_cmp_ge_u32 s2, {G5_WGS}")
    k("s_cbranch_scc1 .g5_end")
    k(f"s_load_dwordx2 s[4:5], s[0:1], {KA['w2']}")
    k(f"s_load_dwordx2 s[6:7], s[0:1], {KA['wo']}")
    k(f"s_load_dwordx2 s[8:9], s[0:1], {KA['ws']}")
    k(f"s_load_dwordx2 s[10:11], s[0:1], {KA['b2']}")
    k(f"s_load_dwordx2 s[12:13], s[0:1], {KA['x']}")
    k(f"s_load_dwordx2 s[14:15], s[0:1], {KA['out']}")
    m, s = magic_div(9, G5_WGS + 64)
    k("s_and_b32 s3, s2, 7")
    k("s_mul_i32 s3, s3, 36")
    k("s_lshr_b32 s47, s2, 3")
    k("s_add_u32 s2, s3, s47")
    k(f"s_mul_i32 s3, s2, {m}")
    k(f"s_lshr_b32 s3, s3, {s}")
    k("s_mul_i32 s47, s3, 9")
    k("s_sub_u32 s47, s2, s47")
    k(f"s_lshl_b32 s{R['sm0']}, s3, 6")
    k(f"s_lshl_b32 s{R['sn0']}, s47, 6")
    k("s_waitcnt lgkmcnt(0)")
    k.srd(16, 8, S * 4608 * 2, add=WS_H)
    k.srd(20, 4, 4608 * 576 * 2)
    k(f"s_mov_b32 s{R['sofA']}, 0")
    k(f"s_mov_b32 s{R['sofB']}, 0")
    gemm_setup(k, c, R)
    zero_acc(k, acc1, 32)
    gemm_mainloop(k, c, R, 4608 // c.BK, acc1, "g5a")
    k("s_barrier")
    k.srd(16, 8, S * 576 * 2, add=WS_O)
    k.srd(20, 6, 576 * 576 * 2)
    R['lda'] = 1152
    k(f"s_mov_b32 s{R['sofA']}, 0")
    k(f"s_mov_b32 s{R['sofB']}, 0")
    gemm_setup(k, c, R)
    gemm_mainloop(k, c, R, 576 // c.BK, acc2, "g5b")
    k.nop(16)
    k.srd(24, 14, S * 576 * 2)
    k.srd(28, 12, S * 576 * 2)
    k.srd(32, 10, 576 * 2)
    t = R['tmp']
    k(f"v_lshrrev_b32 v{t+1}, 6, v0")
    k(f"v_lshrrev_b32 v{t+2}, 1, v{t+1}")
    k(f"v_lshlrev_b32 v{t+2}, 5, v{t+2}")
    k(f"v_and_b32 v{t+3}, 31, v0")
    k(f"v_add_u32 v{t+2}, v{t+2}, v{t+3}")
    k(f"v_add_u32 v{t+2}, s{R['sm0']}, v{t+2}")
    k(f"v_mul_u32_u24 v{t}, 1152, v{t+2}")
    k(f"v_and_b32 v{t+1}, 1, v{t+1}")
    k(f"v_lshlrev_b32 v{t+1}, 5, v{t+1}")
    k(f"v_bfe_u32 v{t+3}, v0, 5, 1")
    k(f"v_lshl_add_u32 v{t+1}, v{t+3}, 2, v{t+1}")
    k(f"v_add_u32 v{t+1}, s{R['sn0']}, v{t+1}")
    k(f"v_lshlrev_b32 v{t+1}, 1, v{t+1}")
    k(f"v_add_u32 v{t}, v{t}, v{t+1}")
    for g in range(4):
        k(f"buffer_load_dwordx2 v[{40+2*g}:{41+2*g}], v{t}, s[28:31], 0 offen offset:{16*g}")
        k(f"buffer_load_dwordx2 v[{48+2*g}:{49+2*g}], v{t+1}, s[32:35], 0 offen offset:{16*g}")
    k("s_waitcnt vmcnt(0)")
    for g in range(4):
        for j in range(4):
            a1 = acc1 + 4 * g + j
            a2 = acc2 + 4 * g + j
            xr = 40 + 2 * g + (j >> 1)
            br = 48 + 2 * g + (j >> 1)
            if j & 1:
                k(f"v_and_b32 v60, 0xffff0000, v{xr}")
                k(f"v_and_b32 v61, 0xffff0000, v{br}")
            else:
                k(f"v_lshlrev_b32 v60, 16, v{xr}")
                k(f"v_lshlrev_b32 v61, 16, v{br}")
            k(f"v_cvt_pk_bf16_f32 v62, v{a1}, v{a2}")
            k("v_lshlrev_b32 v63, 16, v62")
            k("v_and_b32 v64, 0xffff0000, v62")
            k("v_add_f32 v63, v63, v61")
            k("v_cvt_pk_bf16_f32 v62, v63, v63")
            k("v_lshlrev_b32 v63, 16, v62")
            k(f"v_mul_f32 v62, {f32hex(-LOG2E)}, v63")
            k("v_exp_f32 v62, v62")
            k.nop(1)
            k("v_add_f32 v62, 1.0, v62")
            k("v_rcp_f32 v62, v62")
            k.nop(1)
            k("v_mul_f32 v63, v63, v62")
            k("v_cvt_pk_bf16_f32 v62, v63, v63")
            k("v_lshlrev_b32 v63, 16, v62")
            k("v_mul_f32 v63, v63, v64")
            k("v_cvt_pk_bf16_f32 v62, v63, v63")
            k("v_lshlrev_b32 v63, 16, v62")
            k(f"v_add_f32 v{a1}, v60, v63")
        a = acc1 + 4 * g
        k(f"v_cvt_pk_bf16_f32 v{a}, v{a}, v{a+1}")
        k(f"v_cvt_pk_bf16_f32 v{a+1}, v{a+2}, v{a+3}")
        k(f"buffer_store_dwordx2 v[{a}:{a+1}], v{t}, s[24:27], 0 offen offset:{16*g}")
    k.label(".g5_end")
    return k


def build(which):
    kernels = []
    launches = []
    k = gen_ln()
    kernels.append((k, 120))
    launches.append(("ln_kernel", 64, 256, 0))
    if which >= 2:
        k = gen_gemm1()
        kernels.append((k, 64 + 96))
        launches.append(("gemm1_kernel", G1_WGS, 256, G1.lds))
    if which >= 3:
        kernels.append((gen_attn_a(), 120))
        launches.append(("attna_kernel", 256, 256, ATT_LDS_A))
    if which >= 4:
        kernels.append((gen_attn_b(), 160))
        launches.append(("attnb_kernel", 256, 256, ATT_LDS_B))
    if which >= 5:
        kernels.append((gen_final(), 112))
        launches.append(("final_kernel", G5_WGS, 256, G5.lds))
    head = "; generated by dev/gen.py\n"
    for (n, g, b, lds) in launches:
        head += f"; @launch kernel={n} grid=({g},1,1) block=({b},1,1) lds={lds}\n"
    head += '.amdgcn_target "amdgcn-amd-amdhsa--gfx950"\n.text\n'
    body, desc = "", ""
    for (k, nv) in kernels:
        b, d = kernel_wrap(k, nv)
        body += b
        desc += ".p2align 6\n" + d
    return head + body + '.section .rodata,"a"\n' + desc


if __name__ == "__main__":
    which = int(sys.argv[1]) if len(sys.argv) > 1 else 99
    out = sys.argv[2] if len(sys.argv) > 2 else f"cdna_kernels/{NAME}.s"
    open(out, "w").write(build(which))
    print("wrote", out)
```
